```python
import torch

def _softmax(x, axis=-1):
    return torch.softmax(x, dim=axis)
def _gelu(x):
    return torch.nn.functional.gelu(x, approximate="tanh")
def _silu(x):
    return torch.nn.functional.silu(x)
def _sigmoid(x):
    return torch.sigmoid(x)
def _layernorm(x, axis=-1, eps=1e-5):
    m = x.mean(dim=axis, keepdim=True)
    v = x.var(dim=axis, keepdim=True, unbiased=False)
    return (x - m) / torch.sqrt(v + eps)
def _scatter_add(tgt, idx, src, axis=0):
    return tgt.clone().index_add_(axis, idx, src)
def _segment_sum(src, seg, n):
    out = torch.zeros((n,) + src.shape[1:], dtype=src.dtype)
    return out.index_add_(0, seg, src)
def _pad(x, pw):
    flat = tuple(v for pair in reversed(pw) for v in pair)
    return torch.nn.functional.pad(x, flat)

kernel_name = 'standalone__dense_activation_squared_relu__prompt'

def setup_inputs():

    _w = (lambda a: (lambda t: t.to(torch.bfloat16) if t.is_floating_point() else t)(torch.as_tensor(a)))
    B, S, D, F = 1, 2048, 512, 1792
    return {
        "x": _w((lambda *s: torch.randn(*s, dtype=torch.bfloat16) * 0.05)(B, S, D)),
        "w1": _w((lambda *s: torch.randn(*s, dtype=torch.bfloat16) * 0.05)(D, F)),
        "b1": _w((lambda *s: torch.randn(*s, dtype=torch.bfloat16) * 0.05)(F)),
        "w2": _w((lambda *s: torch.randn(*s, dtype=torch.bfloat16) * 0.05)(F, D)),
        "b2": _w((lambda *s: torch.randn(*s, dtype=torch.bfloat16) * 0.05)(D)),
    }

def reference(x, w1, b1, w2, b2):
    h = torch.einsum("bsd,df->bsf", x, w1) + b1
    zero = torch.zeros_like(h)
    r = torch.where(h > zero, h, zero)
    h = r * r
    out = torch.einsum("bsf,fd->bsd", h, w2) + b2
    return out
```

```python
NAME = "standalone__dense_activation_squared_relu__prompt"
HEADER = """; Kernarg layout for this problem (64 bytes, ptrs only, base s[0:1]):
"""
class Asm:
    def __init__(self):
        self.lines = []
    def __call__(self, s=""):
        for l in s.split("\n"):
            l = l.strip()
            if not l: continue
            if l.endswith(":") or l.startswith("."):
                self.lines.append(l)
            else:
                self.lines.append("    " + l)
    def text(self):
        return "\n".join(self.lines) + "\n"

def kernel_file(kernels, single=False):
    out = HEADER
    if single:
        k = kernels[0]
        out += f"; @launch grid=({k['grid']},1,1) block=({k['block']},1,1) lds={k['lds']}\n"
    else:
        for k in kernels:
            out += f"; @launch kernel={k['name']} grid=({k['grid']},1,1) block=({k['block']},1,1) lds={k['lds']}\n"
    out += '.amdgcn_target "amdgcn-amd-amdhsa--gfx950"\n.text\n'
    seen = []
    for k in kernels:
        if k['name'] in seen: continue
        seen.append(k['name'])
        out += f".globl {k['name']}\n.p2align 8\n.type {k['name']},@function\n{k['name']}:\n" + k['body']
    out += '.section .rodata,"a"\n'
    seen = []
    for k in kernels:
        if k['name'] in seen: continue
        seen.append(k['name'])
        out += f""".p2align 6
.amdhsa_kernel {k['name']}
  .amdhsa_next_free_vgpr {k['vgpr']}
  .amdhsa_next_free_sgpr {k.get('sgpr', 96)}
  .amdhsa_accum_offset {k['accum']}
  .amdhsa_group_segment_fixed_size 0
  .amdhsa_kernarg_size 64
  .amdhsa_user_sgpr_count 2
  .amdhsa_user_sgpr_kernarg_segment_ptr 1
  .amdhsa_system_sgpr_workgroup_id_x 1
  .amdhsa_float_denorm_mode_32 3
  .amdhsa_float_denorm_mode_16_64 3
.end_amdhsa_kernel
"""
    return out

STAMP_OFF = 0x8000000
def stamp(a, i, base=64):
    a(f"s_memrealtime s[{base+2*i}:{base+2*i+1}]")

def stamp_flush(a, n, ws_lo, slot_sreg, base=64, vtmp=0):
    a("s_waitcnt lgkmcnt(0)")
    a(f"s_lshl_b32 s{base-2}, s{slot_sreg}, 7")
    a(f"s_add_u32 s{base-2}, s{base-2}, {STAMP_OFF}")
    a(f"v_mov_b32 v{vtmp}, s{base-2}")
    a("s_mov_b64 exec, 1")
    for i in range(n):
        a(f"v_mov_b32 v{vtmp+2}, s{base+2*i}")
        a(f"v_mov_b32 v{vtmp+3}, s{base+2*i+1}")
        a(f"global_store_dwordx2 v{vtmp}, v[{vtmp+2}:{vtmp+3}], s[{ws_lo}:{ws_lo+1}] offset:{8*i}")
        a("s_nop 1")
    a("s_mov_b64 exec, -1")
```

```python
import sys, argparse
from ag import *

H_BYTES = 64 * 112 * 1024
FLAG_OFF = H_BYTES
EPOCH_OFF = H_BYTES + 0x10000
WS_REC = H_BYTES + 0x20000
SLOT = 32768

class Cnt:
    def __init__(self, a, name, maxv):
        self.a, self.name, self.maxv, self.q = a, name, maxv, []
    def issue(self, tag):
        self.q.append(tag)
    def wait(self, tags, emit=True):
        if isinstance(tags, str): tags = [tags]
        last = max([i for i, t in enumerate(self.q) if t in tags], default=-1)
        if last < 0: return
        n = len(self.q) - 1 - last
        self.q = self.q[last + 1:]
        n = min(n, self.maxv)
        if emit: self.a(f"s_waitcnt {self.name}({n})")
    def drain(self):
        self.q = []
        self.a(f"s_waitcnt {self.name}(0)")

class K:
    def __init__(self, o):
        self.o = o
        self.a = Asm()
        self.vm = Cnt(self.a, "vmcnt", 63)
        self.lg = Cnt(self.a, "lgkmcnt", 15)
        self.nst = 0
    def stamp(self):
        if self.o.stamps:
            stamp(self.a, self.nst); self.nst += 1

    def prologue(self, endlabel):
        a = self.a
        self.stamp()
        a(f"s_cmp_ge_u32 s2, 256\ns_cbranch_scc1 {endlabel}")
        a("s_load_dwordx16 s[4:19], s[0:1], 0")
        a("v_readfirstlane_b32 s20, v0")
        a("v_and_b32 v1, 63, v0")
        a("s_and_b32 s21, s2, 7\ns_lshr_b32 s22, s2, 3")
        a("s_lshr_b32 s20, s20, 6")
        for srd, sz in ((24, 2097152), (28, 1835008), (32, 1835008), (36, WS_REC), (40, 2097152)):
            a(f"s_mov_b32 s{srd+2}, {sz}\ns_mov_b32 s{srd+3}, 0x20000")
        a("s_and_b32 s44, s21, 3\ns_lshl_b32 s44, s44, 2\ns_and_b32 s23, s22, 3\ns_add_u32 s44, s44, s23")
        a("s_lshr_b32 s45, s21, 2\ns_mul_i32 s45, s45, 7\ns_lshr_b32 s23, s22, 2\ns_add_u32 s45, s45, s23")
        a("s_and_b32 s46, s21, 3\ns_lshl_b32 s46, s46, 3\ns_lshr_b32 s23, s21, 2\ns_lshl_b32 s23, s23, 2\ns_add_u32 s46, s46, s23")
        a("s_lshr_b32 s23, s22, 3\ns_add_u32 s46, s46, s23")
        a("s_and_b32 s47, s22, 7")
        a("v_lshlrev_b32 v11, 4, v1")
    def srds(self):
        a = self.a
        a("s_waitcnt lgkmcnt(0)")
        for srd, p in ((24, 4), (28, 6), (32, 10), (36, 18), (40, 14)):
            a(f"s_mov_b32 s{srd}, s{p}\ns_and_b32 s{srd+1}, s{p+1}, 0xffff")

    def p1_addr_dma(self):
        a = self.a
        a("v_lshrrev_b32 v2, 3, v1\nv_lshrrev_b32 v3, 4, v1\nv_and_b32 v4, 7, v1")
        a("v_xor_b32 v5, v4, v3\nv_lshlrev_b32 v5, 4, v5\nv_lshl_add_u32 v12, v2, 10, v5")
        a("v_xor_b32 v13, 64, v12")
        a(f"v_add_u32 v13, {1*7168}, v13\nv_add_u32 v14, {2*7168}, v12\nv_add_u32 v15, {2*7168}, v13")
        a("v_and_b32 v4, 15, v1\nv_lshlrev_b32 v5, 2, v3\nv_xor_b32 v4, v4, v5\nv_lshlrev_b32 v4, 4, v4")
        a("v_mul_u32_u24 v5, 3584, v3\nv_add_u32 v16, v4, v5")
        for j in range(1, 4):
            a(f"v_add_u32 v{16+j}, {j*(4*3584-1024)}, v16")
        a("s_lshl_b32 s50, s44, 17\ns_lshl_b32 s23, s20, 15\ns_add_u32 s50, s50, s23")
        a(f"s_mul_i32 s51, s20, {16*3584}\ns_lshl_b32 s23, s45, 8\ns_add_u32 s51, s51, s23")
        a("s_lshl_b32 s52, s20, 12")
    def p1_dma(self, c):
        a = self.a
        slot = (c % 5) * SLOT
        a(f"s_add_u32 m0, s52, {slot}")
        a(f"s_add_u32 s53, s50, {c*128}")
        for j in range(4):
            a(f"buffer_load_dwordx4 v{12+j}, s[24:27], s53 offen offset:{j*1024} lds"); self.vm.issue(f"c{c}")
        a(f"s_add_u32 m0, s52, {slot+16384}")
        a(f"s_add_u32 s53, s51, {c*64*3584}")
        for j in range(4):
            a(f"buffer_load_dwordx4 v{16+j}, s[28:31], s53 offen offset:{j*1024} lds"); self.vm.issue(f"c{c}")
    def p1_bias_load(self):
        a = self.a
        a("s_lshl_b32 s23, s45, 8\ns_lshr_b32 s53, s20, 1\ns_lshl_b32 s53, s53, 7\ns_add_u32 s23, s23, s53")
        a("v_lshrrev_b32 v6, 5, v1\nv_lshlrev_b32 v6, 3, v6\nv_add_u32 v6, s23, v6")
        for fi in range(2):
            for g in range(4):
                r = 208 + (fi * 4 + g) * 2
                a(f"global_load_dwordx2 v[{r}:{r+1}], v6, s[8:9] offset:{(32*fi+8*g)*2}"); self.vm.issue("b1")
    def p1_bias_unpack(self):
        a = self.a
        for i in range(16):
            a(f"v_lshlrev_b32 v{32+2*i}, 16, v{208+i}\nv_and_b32 v{33+2*i}, 0xffff0000, v{208+i}")
    def p1_addr_read(self):
        a = self.a
        self.XR = [[224 + 6*b + s for s in range(4)] for b in range(3)]
        self.WR = [[224 + 6*b + 4 + f for f in range(2)] for b in range(3)]
        a("v_and_b32 v2, 31, v1\nv_lshrrev_b32 v3, 5, v1")
        a("v_bfe_u32 v4, v1, 1, 3")
        a("s_and_b32 s23, s20, 1\ns_lshl_b32 s23, s23, 13")
        a("v_lshl_add_u32 v5, v2, 7, s23")
        for s in range(4):
            a(f"v_or_b32 v7, {2*s}, v3\nv_xor_b32 v7, v7, v4\nv_lshl_add_u32 v{self.XR[0][s]}, v7, 4, v5")
        a("v_bfe_u32 v2, v1, 2, 2\nv_and_b32 v4, 3, v1\nv_bfe_u32 v5, v1, 4, 1")
        a("v_lshl_add_u32 v7, v3, 3, v2\nv_lshlrev_b32 v7, 8, v7")
        a("v_lshl_add_u32 v7, v5, 5, v7\nv_lshl_add_u32 v7, v4, 3, v7")
        a("s_and_b32 s23, s20, 2")
        for f in range(2):
            a(f"s_or_b32 s53, s23, {f}\nv_xor_b32 v8, s53, v2\nv_lshl_add_u32 v{self.WR[0][f]}, v8, 6, v7")
        for b in (1, 2):
            for i in range(6):
                a(f"v_add_u32 v{224+6*b+i}, {b*65536}, v{224+i}")
    def p1_frag(self, n):
        return 128 + 16 * (n % 3)
    def p1_reads(self, n):
        c, s = n // 4, n % 4
        slot = c % 5; b, so = slot // 2, (slot % 2) * SLOT
        f = self.p1_frag(n)
        R = []
        R.append(f"ds_read_b128 v[{f+8}:{f+11}], v{self.XR[b][s]} offset:{so}")
        R.append(f"ds_read_b64_tr_b16 v[{f}:{f+1}], v{self.WR[b][0]} offset:{so+16384+s*4096}")
        R.append(f"ds_read_b64_tr_b16 v[{f+2}:{f+3}], v{self.WR[b][0]} offset:{so+16384+s*4096+1024}")
        R.append(f"ds_read_b128 v[{f+12}:{f+15}], v{self.XR[b][s]} offset:{so+4096}")
        R.append(f"ds_read_b64_tr_b16 v[{f+4}:{f+5}], v{self.WR[b][1]} offset:{so+16384+s*4096}")
        R.append(f"ds_read_b64_tr_b16 v[{f+6}:{f+7}], v{self.WR[b][1]} offset:{so+16384+s*4096+1024}")
        return R
    def acc1(self, fi, mi):
        return 64 + 16 * (2 * fi + mi)
    def p1_main(self, hook):
        a, vm, lg = self.a, self.vm, self.lg
        vm.wait("c0")
        self.stamp()
        self.p1_bias_unpack()
        a("s_barrier")
        for n in (0, 1):
            for r in self.p1_reads(n): a(r); lg.issue(f"r{n}")
        for n in range(32):
            c, s = n // 4, n % 4
            if s == 2 and c < 7:
                vm.wait(f"c{c+1}")
                a("s_barrier")
            lg.wait(f"r{n}")
            if n == 31:
                a("s_barrier")
            R = self.p1_reads(n + 2) if n + 2 < 32 else []
            f = self.p1_frag(n)
            for q, (fi, mi) in enumerate(((0, 0), (0, 1), (1, 1), (1, 0))):
                d = self.acc1(fi, mi)
                cs = f"v[{32+16*fi}:{47+16*fi}]" if n == 0 else f"v[{d}:{d+15}]"
                a(f"v_mfma_f32_32x32x16_bf16 v[{d}:{d+15}], v[{f+4*fi}:{f+4*fi+3}], v[{f+8+4*mi}:{f+11+4*mi}], {cs}")
                for r in R[2*q:2*q+2]: a(r); lg.issue(f"r{n+2}")
                if q == 3 or (q == 0 and not R):
                    pass
            if s == 2 and 1 <= c <= 3:
                self.p1_dma(c + 4)
            if s == 2 and c >= 4 and c < 7:
                hook(f"B{c+1}")
            if n == 31:
                hook("BE")
    def p1_epilogue(self, sc):
        a = self.a
        a("s_and_b32 s23, s20, 1\ns_lshl_b32 s23, s23, 1\ns_lshl_b32 s53, s44, 2\ns_add_u32 s23, s23, s53")
        a("s_mul_i32 s23, s23, 112\ns_lshl_b32 s53, s45, 3\ns_add_u32 s23, s23, s53")
        a("s_and_b32 s53, s20, 2\ns_lshl_b32 s53, s53, 1\ns_add_u32 s23, s23, s53\ns_lshl_b32 s54, s23, 10")
        a(f"s_add_u32 s55, s54, {112*1024}")
        a("s_nop 1")
        for q, (fi, mi) in enumerate(((0, 0), (0, 1), (1, 1), (1, 0))):
            d = self.acc1(fi, mi); p = 176 + 8 * q
            for half in range(2):
                for i in range(8):
                    a(f"v_max_f32 v{d+8*half+i}, 0, v{d+8*half+i}")
                for i in range(4):
                    r = d + 8 * half + 2 * i
                    a(f"v_pk_mul_f32 v[{r}:{r+1}], v[{r}:{r+1}], v[{r}:{r+1}]")
                for i in range(4):
                    r = d + 8 * half + 2 * i
                    a(f"v_cvt_pk_bf16_f32 v{p+4*half+i}, v{r}, v{r+1}")
                a(f"buffer_store_dwordx4 v[{p+4*half}:{p+4*half+3}], v11, s[36:39], s{54+mi} offen offset:{(2*fi+half)*1024}{sc}")
                self.vm.issue("hst")

    W2SLOT = [3, 3, 4, 4, 0, 0, 1, 1, 2, 2, 3, 3, 4, 4]
    def w2_addr(self):
        a = self.a
        a("v_lshrrev_b32 v2, 3, v1\nv_bfe_u32 v3, v1, 4, 1\nv_and_b32 v4, 7, v1")
        a("v_lshlrev_b32 v3, 2, v3\nv_xor_b32 v4, v4, v3\nv_lshlrev_b32 v4, 4, v4\nv_lshl_add_u32 v20, v2, 10, v4")
        for j in range(1, 4):
            a(f"v_add_u32 v{20+j}, {j*7168}, v20")
        a(f"s_mul_i32 s56, s20, {448*1024}\ns_lshl_b32 s23, s47, 7\ns_add_u32 s56, s56, s23")
        a("s_lshl_b32 s57, s20, 13")
        a("v_bfe_u32 v2, v1, 2, 2\nv_and_b32 v4, 3, v1\nv_bfe_u32 v5, v1, 4, 1\nv_lshrrev_b32 v3, 5, v1")
        a("v_lshl_add_u32 v7, v3, 2, v2\nv_lshlrev_b32 v7, 7, v7")
        a("v_lshl_add_u32 v7, v5, 5, v7\nv_lshl_add_u32 v7, v4, 3, v7\nv_add_u32 v7, s57, v7")
        a("v_lshrrev_b32 v2, 1, v2\nv_lshl_add_u32 v24, v2, 6, v7\nv_xor_b32 v25, 64, v24")
        for b in (1, 2):
            a(f"v_add_u32 v{24+2*b}, {b*65536}, v24\nv_add_u32 v{25+2*b}, {b*65536}, v25")
    def w2_dma(self, q):
        a = self.a
        a(f"s_add_u32 m0, s57, {self.W2SLOT[q]*SLOT + (q&1)*4096}")
        a(f"s_add_u32 s53, s56, {q*32*1024}")
        for j in range(4):
            a(f"buffer_load_dwordx4 v{20+j}, s[32:35], s53 offen offset:{j*1024} lds"); self.vm.issue(f"w{q}")
    def w2_tr(self, q):
        a = self.a
        slot = self.W2SLOT[q]; b, so = slot // 2, (slot % 2) * SLOT + (q & 1) * 4096
        for sl in range(2):
            s = 2 * q + sl
            for ni in range(2):
                r = (2 * s + ni) * 4
                for half in range(2):
                    a(f"ds_read_b64_tr_b16 a[{r+2*half}:{r+2*half+1}], v{24+2*b+ni} offset:{so+sl*2048+half*1024}")
                    self.lg.issue(f"t{q}")
                    if len(self.lg.q) > 15: self.lg.q = self.lg.q[-15:]

    def p2_setup(self):
        a = self.a
        a("v_and_b32 v8, 31, v1\nv_lshrrev_b32 v9, 5, v1\nv_and_b32 v10, 7, v1")
        a("v_xor_b32 v9, v9, v10\nv_lshlrev_b32 v9, 4, v9\nv_lshl_add_u32 v9, v8, 8, v9\nv_add_u32 v2, s57, v9")
        for g in range(1, 4):
            a(f"v_xor_b32 v{2+g}, {32*g}, v2")
        a("v_lshrrev_b32 v8, 4, v0\nv_and_b32 v9, 15, v0\nv_and_b32 v10, 7, v8")
        a("v_xor_b32 v10, v10, v9\nv_lshlrev_b32 v10, 4, v10\nv_lshl_add_u32 v6, v8, 8, v10")
        a("s_lshl_b32 s23, s46, 16\ns_lshl_b32 s53, s47, 7\ns_add_u32 s58, s23, s53")
        a("v_lshlrev_b32 v7, 10, v8\nv_lshl_add_u32 v7, v9, 3, v7")
        a("v_lshl_add_u32 v10, v9, 3, s53")
        a("global_load_dwordx2 v[8:9], v10, s[12:13]"); self.vm.issue("b2")
        a(f"s_mul_i32 s59, s46, {224*1024}\ns_mul_i32 s23, s20, {28*1024}\ns_add_u32 s59, s59, s23")
    def hreg(self, idx):
        q = idx % 52
        return f"v[{80+4*q}:{83+4*q}]" if q < 44 else f"a[{224+4*(q-44)}:{227+4*(q-44)}]"
    def p2_load(self, s, sc):
        a = self.a
        if s % 4 == 0:
            a(f"s_add_u32 s60, s59, {s*1024}\ns_add_u32 s61, s59, {(112+s)*1024}")
        for mi in range(2):
            a(f"buffer_load_dwordx4 {self.hreg(2*s+mi)}, v11, s[36:39], s{60+mi} offen offset:{(s%4)*1024}{sc}")
            self.vm.issue(f"h{s}")
    def acc2(self, ni, mi):
        return 16 + 16 * (2 * ni + mi)
    def p2_main(self, sc):
        a, vm = self.a, self.vm
        for s in range(26): self.p2_load(s, sc)
        self.stamp()
        for s in range(28):
            vm.wait(f"h{s}")
            if s == 0: self.stamp()
            for (ni, mi) in ((0, 0), (1, 0), (1, 1), (0, 1)):
                d = self.acc2(ni, mi); r = (2 * s + ni) * 4
                cs = "0" if s == 0 else f"v[{d}:{d+15}]"
                a(f"v_mfma_f32_32x32x16_bf16 v[{d}:{d+15}], a[{r}:{r+3}], {self.hreg(2*s+mi)}, {cs}")
            if s in (0, 1): self.p2_load(26 + s, sc)
    def p2_final(self):
        a, lg = self.a, self.lg
        self.stamp()
        a("v_lshlrev_b32 v12, 16, v8\nv_and_b32 v13, 0xffff0000, v8\nv_lshlrev_b32 v14, 16, v9\nv_and_b32 v15, 0xffff0000, v9")
        a("s_nop 7")
        for (ni, mi) in ((0, 0), (1, 0), (1, 1), (0, 1)):
            d = self.acc2(ni, mi)
            for g in range(4):
                a(f"ds_write_b128 v{2+g}, v[{d+4*g}:{d+4*g+3}] offset:{mi*32768+ni*128}")
        lg.drain()
        a("s_barrier")
        for i in range(4):
            for src in range(4):
                r = 80 + 16 * i + 4 * src
                a(f"ds_read_b128 v[{r}:{r+3}], v6 offset:{src*8192+(i>>1)*32768+(i&1)*4096}")
        for i in range(4):
            r = 80 + 16 * i
            a(f"s_waitcnt lgkmcnt({12-4*i})")
            for h in (0, 2):
                a(f"v_pk_add_f32 v[{r+h}:{r+h+1}], v[{r+h}:{r+h+1}], v[{r+4+h}:{r+5+h}]")
                a(f"v_pk_add_f32 v[{r+8+h}:{r+9+h}], v[{r+8+h}:{r+9+h}], v[{r+12+h}:{r+13+h}]")
            for h in (0, 2):
                a(f"v_pk_add_f32 v[{r+h}:{r+h+1}], v[{r+h}:{r+h+1}], v[{12+h}:{13+h}]")
            for h in (0, 2):
                a(f"v_pk_add_f32 v[{r+h}:{r+h+1}], v[{r+h}:{r+h+1}], v[{r+8+h}:{r+9+h}]")
            a(f"v_cvt_pk_bf16_f32 v{r+4}, v{r}, v{r+1}\nv_cvt_pk_bf16_f32 v{r+5}, v{r+2}, v{r+3}")
            a(f"s_add_u32 s53, s58, {i*16*1024}")
            a(f"buffer_store_dwordx2 v[{r+4}:{r+5}], v7, s[40:43], s53 offen")
    def finish(self, endlabel):
        a = self.a
        if self.o.stamps:
            a("s_waitcnt vmcnt(0)")
            self.stamp()
            a("s_lshl_b32 s23, s2, 2\ns_add_u32 s23, s23, s20")
            if self.o.slotbase: a(f"s_add_u32 s23, s23, {self.o.slotbase}")
            stamp_flush(a, self.nst, 18, 23)
        a(f"{endlabel}:\ns_endpgm")

def gen_split(o):
    class O: pass
    k1 = K(o); a = k1.a
    k1.prologue("L1_end")
    a("s_cmp_ge_u32 s22, 28\ns_cbranch_scc1 L1_end")
    k1.p1_addr_dma(); k1.srds(); k1.p1_bias_load()
    for c in range(5): k1.p1_dma(c)
    k1.p1_addr_read()
    k1.p1_main(lambda p: None)
    k1.stamp()
    k1.p1_epilogue(" sc1" if o.k1sc1 else "")
    k1.stamp()
    k1.finish("L1_end")
    o2 = argparse.Namespace(**vars(o)); o2.slotbase = 1024
    k2 = K(o2); a = k2.a
    k2.prologue("L2_end")
    k2.w2_addr(); k2.srds()
    for q in range(10): k2.w2_dma(q)
    k2.p2_setup()
    for q in range(14):
        k2.vm.wait(f"w{q}")
        k2.w2_tr(q)
        if q in (1, 3):
            k2.lg.drain()
            k2.w2_dma(9 + q); k2.w2_dma(10 + q)
    k2.lg.drain()
    k2.p2_main("")
    k2.p2_final()
    k2.finish("L2_end")
    return kernel_file([
        dict(name="ffn1_kernel", grid=256, block=256, lds=160*1024, body=k1.a.text(), vgpr=512, accum=256),
        dict(name="ffn2_kernel", grid=256, block=256, lds=160*1024, body=k2.a.text(), vgpr=512, accum=256)])

if __name__ == "__main__":
    ap = argparse.ArgumentParser()
    ap.add_argument("out")
    ap.add_argument("--mode", default="split")
    ap.add_argument("--stamps", action="store_true")
    ap.add_argument("--k1sc1", action="store_true")
    o = ap.parse_args()
    o.slotbase = 0
    t = gen_split(o) if o.mode == "split" else None
    open(o.out, "w").write(t)
```

```python
import sys, argparse
import ag
from ag import *
from gen import K, Cnt, H_BYTES, FLAG_OFF, EPOCH_OFF, WS_REC, SLOT

STB = 78
QT = 64
SPIN = 0x40000

class F(K):
    def stamp(self):
        if self.o.stamps:
            stamp(self.a, self.nst, STB); self.nst += 1
    def p1_rot(self):
        a = self.a
        if self.o.rot1 == 4:
            a("s_lshr_b32 s23, s22, 2\ns_add_u32 s23, s23, s22\ns_and_b32 s23, s23, 3\ns_lshl_b32 s49, s23, 1")
        elif self.o.rot1 == 2:
            a("s_lshr_b32 s23, s22, 2\ns_add_u32 s23, s23, s22\ns_and_b32 s23, s23, 1\ns_lshl_b32 s49, s23, 2")
        elif self.o.rot1 == 8:
            a("s_lshr_b32 s23, s22, 2\ns_lshl_b32 s49, s22, 1\ns_add_u32 s49, s49, s23\ns_and_b32 s49, s49, 7")
        elif self.o.rot1 == 3:
            a("s_lshr_b32 s23, s22, 2\ns_and_b32 s49, s22, 3\ns_add_u32 s23, s23, s49\ns_mul_i32 s49, s23, 11\ns_lshr_b32 s49, s49, 5")
            a("s_mul_i32 s49, s49, 3\ns_sub_u32 s23, s23, s49\ns_mul_i32 s49, s23, 3")
        else:
            a("s_mov_b32 s49, 0")
    def p1_dma_pieces(self, i):
        slot = (i % 5) * SLOT
        P = []
        for j in range(4):
            pre = ""
            if j == 0:
                pre = f"s_add_u32 s23, s49, {i}\ns_and_b32 s23, s23, 7\ns_lshl_b32 s53, s23, 7\ns_add_u32 m0, s52, {slot}\ns_add_u32 s53, s53, s50\n"
            P.append((pre + f"buffer_load_dwordx4 v{12+j}, s[24:27], s53 offen offset:{j*1024} lds", f"c{i}"))
        for j in range(4):
            pre = ""
            if j == 0:
                pre = f"s_mul_i32 s53, s23, {64*3584}\ns_add_u32 m0, s52, {slot+16384}\ns_add_u32 s53, s53, s51\n"
            P.append((pre + f"buffer_load_dwordx4 v{16+j}, s[28:31], s53 offen offset:{j*1024} lds", f"c{i}"))
        return P
    def w2_pieces(self, q):
        P = []
        for j in range(4):
            pre = ""
            if j == 0:
                pre = f"s_lshl_b32 s53, s{QT+q}, 5\ns_add_u32 m0, s57, {self.W2SLOT[q]*SLOT + (q&1)*4096}\ns_add_u32 s53, s53, s56\n"
            P.append((pre + f"buffer_load_dwordx4 v{20+j}, s[32:35], s53 offen offset:{j*1024} lds", f"w{q}"))
        return P
    def emit_piece(self, p):
        self.a(p[0]); self.vm.issue(p[1])
    def w2_dma(self, q):
        for p in self.w2_pieces(q): self.emit_piece(p)
    def q_table(self):
        a, o = self.a, self.o
        a(f"s_mul_i32 s62, s21, {o.rqx}\ns_lshr_b32 s62, s62, 2")
        a("s_lshr_b32 s23, s22, 3\ns_add_u32 s23, s23, s22\ns_and_b32 s23, s23, 1")
        a(f"s_mul_i32 s23, s23, {o.rqh}\ns_add_u32 s63, s62, s23")
        a("s_cmp_ge_u32 s63, 14\ns_cselect_b32 s23, 14, 0\ns_sub_u32 s63, s63, s23")
        a(f"s_lshl_b32 s{QT}, s63, 10")
        for q in range(1, 14):
            a(f"s_add_u32 s{QT+q}, s{QT+q-1}, 1024\ns_cmp_eq_u32 s{QT+q}, {14*1024}\ns_cselect_b32 s{QT+q}, 0, s{QT+q}")
    def w2_tr_list(self, q):
        slot = self.W2SLOT[q]; b, so = slot // 2, (slot % 2) * SLOT + (q & 1) * 4096
        L = []
        for sl in range(2):
            s = 2 * q + sl
            for ni in range(2):
                r = (2 * s + ni) * 4
                for half in range(2):
                    L.append(f"ds_read_b64_tr_b16 a[{r+2*half}:{r+2*half+1}], v{24+2*b+ni} offset:{so+sl*2048+half*1024}")
        return L
    def w2_tr(self, q):
        self.vm.wait(f"w{q}")
        for l in self.w2_tr_list(q): self.a(l)

    def p1_main(self):
        a, vm, lg, o = self.a, self.vm, self.lg, self.o
        vm.wait("c0")
        self.stamp()
        self.p1_bias_unpack()
        a("s_barrier")
        for n in (0, 1):
            for r in self.p1_reads(n): a(r); lg.issue(f"r{n}")
        pend = []
        for n in range(32):
            c, s = n // 4, n % 4
            if s == 0:
                if c == 0:
                    for i in range(o.up, 3): pend += self.p1_dma_pieces(i)
                if c <= 4: pend += self.p1_dma_pieces(c + 3)
                elif 2 * (c - 5) < o.w2early:
                    pend += self.w2_pieces(2 * (c - 5))
                    if 2 * (c - 5) + 1 < o.w2early: pend += self.w2_pieces(2 * (c - 5) + 1)
            if s == 2 and c < 7:
                while any(p[1] == f"c{c+1}" for p in pend): self.emit_piece(pend.pop(0))
                vm.wait(f"c{c+1}")
                a("s_barrier")
            lg.wait(f"r{n}")
            if n == 31:
                a("s_barrier")
            R = self.p1_reads(n + 2) if n + 2 < 32 else []
            f = self.p1_frag(n)
            left = 4 - s
            quota = -(-len(pend) // left)
            for q, (fi, mi) in enumerate(((0, 0), (0, 1), (1, 1), (1, 0))):
                d = self.acc1(fi, mi)
                cs = f"v[{32+16*fi}:{47+16*fi}]" if n == 0 else f"v[{d}:{d+15}]"
                a(f"v_mfma_f32_32x32x16_bf16 v[{d}:{d+15}], v[{f+4*fi}:{f+4*fi+3}], v[{f+8+4*mi}:{f+11+4*mi}], {cs}")
                for r in R[2*q:2*q+2]: a(r); lg.issue(f"r{n+2}")
                k = (quota * (q + 1)) // 4 - (quota * q) // 4
                for _ in range(k):
                    if pend: self.emit_piece(pend.pop(0))
        assert not pend
    def p1_epilogue(self, extra):
        a, o = self.a, self.o
        a("s_and_b32 s23, s20, 1\ns_lshl_b32 s23, s23, 1\ns_lshl_b32 s53, s44, 2\ns_add_u32 s23, s23, s53")
        a("s_mul_i32 s23, s23, 112\ns_lshl_b32 s53, s45, 3\ns_add_u32 s23, s23, s53")
        a("s_and_b32 s53, s20, 2\ns_lshl_b32 s53, s53, 1\ns_add_u32 s23, s23, s53\ns_lshl_b32 s54, s23, 10")
        a(f"s_add_u32 s55, s54, {112*1024}")
        a("s_nop 1")
        per = -(-len(extra) // 8)
        for q, (fi, mi) in enumerate(((0, 0), (0, 1), (1, 1), (1, 0))):
            d = self.acc1(fi, mi); p = 176 + 8 * q
            for half in range(2):
                ex = extra[:per]; extra = extra[per:]
                for i in range(8):
                    a(f"v_max_f32 v{d+8*half+i}, 0, v{d+8*half+i}")
                    if i % 2 == 1 and ex: a(ex.pop(0))
                for i in range(4):
                    r = d + 8 * half + 2 * i
                    a(f"v_pk_mul_f32 v[{r}:{r+1}], v[{r}:{r+1}], v[{r}:{r+1}]")
                    if ex: a(ex.pop(0))
                for i in range(4):
                    r = d + 8 * half + 2 * i
                    a(f"v_cvt_pk_bf16_f32 v{p+4*half+i}, v{r}, v{r+1}")
                for e in ex: a(e)
                a(f"buffer_store_dwordx4 v[{p+4*half}:{p+4*half+3}], v11, s[36:39], s{54+mi} offen offset:{(2*fi+half)*1024} sc1")
                self.vm.issue("hst")
    def get_tag(self, lbl, first_done):
        a = self.a
        if not first_done:
            a("global_load_dword v30, v31, s[16:17] sc1\ns_waitcnt vmcnt(0)")
        a(f"s_mov_b32 s23, {SPIN}")
        a(f"{lbl}_chk:\nv_readfirstlane_b32 s48, v30\ns_nop 0\ns_cmp_lg_u32 s48, 0\ns_cbranch_scc1 {lbl}_ok")
        a(f"s_sub_u32 s23, s23, 1\ns_cmp_eq_u32 s23, 0\ns_cbranch_scc1 {lbl}_ok")
        a(f"s_sleep 1\nglobal_load_dword v30, v31, s[16:17] sc1\ns_waitcnt vmcnt(0)\ns_branch {lbl}_chk")
        a(f"{lbl}_ok:")
    def flag_addr(self):
        a = self.a
        a("s_lshr_b32 s23, s20, 1\ns_lshl_b32 s53, s45, 1\ns_add_u32 s23, s23, s53")
        a("s_mul_i32 s53, s23, 37\ns_lshr_b32 s53, s53, 8\ns_mul_i32 s60, s53, 7\ns_sub_u32 s23, s23, s60")
        a("s_and_b32 s60, s20, 1\ns_lshl_b32 s61, s44, 1\ns_add_u32 s60, s60, s61\ns_lshl_b32 s60, s60, 2\ns_add_u32 s60, s60, s53")
        a(f"s_lshl_b32 s60, s60, 7\ns_lshl_b32 s23, s23, 2\ns_add_u32 s60, s60, s23\ns_add_u32 s60, s60, {FLAG_OFF}")
        a("v_mov_b32 v244, s60")
    def poll_addr(self):
        a = self.a
        a(f"s_lshl_b32 s23, s46, 2\ns_add_u32 s23, s23, s20\ns_lshl_b32 s23, s23, 7\ns_add_u32 s23, s23, {FLAG_OFF}")
        a("v_min_u32 v245, 6, v1\nv_lshl_add_u32 v245, v245, 2, s23")
        a("v_mov_b32 v31, 0")
    def poll(self):
        a = self.a
        a(f"s_mov_b32 s23, {SPIN}")
        a("L_poll:\nglobal_load_dword v246, v245, s[18:19] sc1\ns_sub_u32 s23, s23, 1\ns_waitcnt vmcnt(0)")
        a("v_cmp_ne_u32 vcc, s48, v246\ns_cmp_eq_u32 s23, 0\ns_cbranch_scc1 L_poll_ok\ns_nop 2\ns_cbranch_vccnz L_poll")
        a("L_poll_ok:")
        self.vm.q = []
    def p2_load(self, s):
        a = self.a
        q = s // 2
        if s % 2 == 0:
            a(f"s_lshl_b32 s60, s{QT+q}, 1\ns_add_u32 s60, s60, s59\ns_add_u32 s61, s60, {112*1024}")
        for mi in range(2):
            a(f"buffer_load_dwordx4 {self.hreg(2*s+mi)}, v11, s[36:39], s{60+mi} offen offset:{(s%2)*1024} sc1")
            self.vm.issue(f"h{s}")
    def p2_main(self):
        a, vm, o = self.a, self.vm, self.o
        nup = o.hup
        for s in range(nup): self.p2_load(s)
        nxt = nup
        for s in range(28):
            vm.wait(f"h{s}")
            if s == 0: self.stamp()
            for k, (ni, mi) in enumerate(((0, 0), (1, 0), (1, 1), (0, 1))):
                d = self.acc2(ni, mi); r = (2 * s + ni) * 4
                cs = "0" if s == 0 else f"v[{d}:{d+15}]"
                a(f"v_mfma_f32_32x32x16_bf16 v[{d}:{d+15}], a[{r}:{r+3}], {self.hreg(2*s+mi)}, {cs}")
                if k == 3 and nxt < 28 and nxt - 26 <= s:
                    self.p2_load(nxt); nxt += 1
    def p2_final(self):
        K.p2_final(self)
        if self.o.outsc:
            L = self.a.lines
            for i in range(len(L)):
                if "buffer_store_dwordx2" in L[i]: L[i] += " " + self.o.outsc
    def idle_path(self):
        a, o = self.a, self.o
        vm = self.vm
        a("s_cmp_eq_u32 s2, 224\ns_cselect_b32 s23, s20, 1\ns_cmp_lg_u32 s23, 0\ns_cbranch_scc1 L_nopub")
        a(f"v_mov_b32 v32, {EPOCH_OFF}\nglobal_load_dword v33, v32, s[18:19]\ns_waitcnt vmcnt(0)")
        a("v_add_u32 v33, 0x2468ace, v33\nv_or_b32 v33, 1, v33\ns_mov_b64 exec, 1")
        a("global_store_dword v31, v33, s[16:17] sc1\nglobal_store_dword v32, v33, s[18:19] sc1\ns_mov_b64 exec, -1")
        a("L_nopub:")
        a("s_sub_u32 s60, s22, 28\ns_lshl_b32 s60, s60, 2\ns_add_u32 s60, s60, s20")
        a("v_lshlrev_b32 v34, 7, v1")
        if o.help1:
            a("v_lshrrev_b32 v35, 4, v1\nv_and_b32 v36, 15, v1\nv_min_u32 v36, 13, v36\nv_mul_u32_u24 v35, 3584, v35\nv_lshl_add_u32 v35, v36, 7, v35")
            a(f"s_lshr_b32 s61, s21, 2\ns_mul_i32 s61, s61, 1792\ns_mul_i32 s23, s60, {4*3584}\ns_add_u32 s61, s61, s23")
            for t in range(o.help1):
                a(f"s_add_u32 s53, s61, {(2*t+1)*64*3584}")
                a(f"buffer_load_dword v{40+t}, v35, s[28:31], s53 offen")
        if o.pf2:
            a(f"s_lshr_b32 s61, s60, 2\ns_mul_i32 s61, s61, {448*1024}\ns_and_b32 s23, s60, 3\ns_lshl_b32 s23, s23, 13\ns_add_u32 s61, s61, s23")
            for t in range(14):
                off = (t >> 1) + 7 * (t & 1) if o.rqh else t
                a(f"s_add_u32 s23, s62, {off}\ns_cmp_ge_u32 s23, 14\ns_cselect_b32 s53, 14, 0\ns_sub_u32 s23, s23, s53")
                a("s_lshl_b32 s23, s23, 15\ns_add_u32 s53, s23, s61")
                a(f"buffer_load_dword v{50+t}, v34, s[32:35], s53 offen")
        vm.q = []
        for q in range(10): self.w2_dma(q)
        for q in range(14):
            self.w2_tr(q)
            if q in (1, 3):
                a("s_waitcnt lgkmcnt(0)")
                self.w2_dma(9 + q); self.w2_dma(10 + q)
        self.get_tag("L_tagi", False)
        vm.q = []

def gen_fused(o):
    k = F(o); a = k.a; vm = k.vm
    k.prologue("L_end")
    k.p1_addr_dma(); k.p1_rot()
    k.srds()
    a("s_cmp_ge_u32 s22, 28\ns_cbranch_scc1 L_idle")
    k.p1_bias_load()
    for i in range(o.up):
        for p in k.p1_dma_pieces(i): k.emit_piece(p)
    k.p1_addr_read(); k.w2_addr(); k.q_table(); k.poll_addr(); k.flag_addr()
    k.p1_main()
    k.stamp()
    ntr = min(o.w2early, o.trearly)
    ex = []
    if ntr:
        vm.wait(f"w{ntr-1}")
        for q in range(ntr): ex += k.w2_tr_list(q)
    k.p1_epilogue(ex)
    a("global_load_dword v30, v31, s[16:17] sc1"); vm.issue("tag")
    k.stamp()
    nq = o.w2early
    for _ in range(o.w2mid):
        if nq < 10: k.w2_dma(nq); nq += 1
    vm.wait("tag")
    k.get_tag("L_taga", True)
    a("s_mov_b64 exec, 1\nglobal_store_dword v244, v30, s[18:19] sc1\ns_mov_b64 exec, -1"); vm.issue("flag")
    k.stamp()
    while nq < 10: k.w2_dma(nq); nq += 1
    done = ntr
    while nq < 14:
        need = nq - 10 + 1 | 1
        while done <= need: k.w2_tr(done); done += 1
        a("s_waitcnt lgkmcnt(0)")
        k.w2_dma(nq); k.w2_dma(nq + 1); nq += 2
    k.p2_setup()
    while done < 14: k.w2_tr(done); done += 1
    a("s_branch L_join")
    nst = k.nst
    a("L_idle:")
    k.w2_addr(); k.q_table(); k.poll_addr()
    k.nst = 1
    k.idle_path()
    k.p2_setup()
    while k.nst < nst: k.stamp()
    a("L_join:")
    k.stamp()
    k.poll()
    k.stamp()
    a("s_waitcnt lgkmcnt(0)")
    k.p2_main()
    k.p2_final()
    if o.stamps:
        a("s_waitcnt vmcnt(0)")
        k.stamp()
        a("s_lshl_b32 s23, s2, 2\ns_add_u32 s23, s23, s20")
        stamp_flush(a, k.nst, 18, 23, base=STB)
    a("L_end:\ns_endpgm")
    print("stamps:", k.nst, file=sys.stderr)
    return kernel_file([dict(name=NAME + "_kernel", grid=256, block=256, lds=160*1024, body=a.text(), vgpr=512, accum=256, sgpr=102)], single=True)

def parser():
    ap = argparse.ArgumentParser()
    ap.add_argument("out")
    ap.add_argument("--stamps", action="store_true")
    ap.add_argument("--rot1", type=int, default=4)
    ap.add_argument("--up", type=int, default=2)
    ap.add_argument("--w2early", type=int, default=6)
    ap.add_argument("--trearly", type=int, default=4)
    ap.add_argument("--w2mid", type=int, default=2)
    ap.add_argument("--rqx", type=int, default=7)
    ap.add_argument("--rqh", type=int, default=7)
    ap.add_argument("--help1", type=int, default=4)
    ap.add_argument("--pf2", type=int, default=1)
    ap.add_argument("--hup", type=int, default=6)
    ap.add_argument("--outsc", default="")
    return ap
if __name__ == "__main__":
    o = parser().parse_args()
    open(o.out, "w").write(gen_fused(o))
```

```python
import sys, argparse
from ag import *
from gen import Cnt

H_BYTES = 128 * 56 * 1024
FLAG_OFF = H_BYTES
EPOCH_OFF = H_BYTES + 0x20000
WS_REC = H_BYTES + 0x30000
SLOT = 32768
STB = 78
QT = 64
CT = [4, 5, 6, 7, 10, 11, 14, 15]
SPIN = 0x40000
MF = "v_mfma_f32_16x16x32_bf16"
V_XD, V_WD, V_W2D = 12, 16, 20
V_BIAS, V_BRAW = 32, 48
V_ACC1 = 64
V_FR = 128
V_PK = 192
V_XR, V_WR = 224, 230
V_T2 = 244
V_TAG, V_ZERO = 30, 31
V_FLAG, V_POLL, V_PV = 24, 25, 26
W2SLOT = [3, 3, 4, 4, 0, 0, 1, 1, 2, 2, 3, 3, 4, 4]

def blocks(spec):
    return [int(x) for x in spec.split(",")]

class G:
    def __init__(self, o):
        self.o = o
        self.a = Asm()
        self.vm = Cnt(self.a, "vmcnt", 63)
        self.lg = Cnt(self.a, "lgkmcnt", 15)
        self.nst = 0
        self.fill = []
    def filler(self, n):
        while n > 0 and self.fill:
            l = self.fill.pop(0); self.a(l); n -= 1
            while "s_cmp" in l or (self.fill and "s_cselect" in self.fill[0]):
                l = self.fill.pop(0); self.a(l)
    def stamp(self):
        if self.o.stamps and self.nst < 12:
            stamp(self.a, self.nst, STB); self.nst += 1
    def mod_small(self, dst, src, m):
        a = self.a
        if m == 1: a(f"s_mov_b32 s{dst}, 0")
        elif m in (2, 4, 8): a(f"s_and_b32 s{dst}, s{src}, {m-1}")
        else:
            mul = {3: 11, 5: 13, 6: 11, 7: 10}[m]; sh = {3: 5, 5: 6, 6: 6, 7: 6}[m]
            for v in range(11): assert (v * mul) >> sh == v // m
            a(f"s_mul_i32 s{dst}, s{src}, {mul}\ns_lshr_b32 s{dst}, s{dst}, {sh}\ns_mul_i32 s{dst}, s{dst}, {m}\ns_sub_u32 s{dst}, s{src}, s{dst}")

    def prologue(self):
        a = self.a
        self.stamp()
        a("s_cmp_ge_u32 s2, 256\ns_cbranch_scc1 L_end")
        a("s_load_dwordx16 s[4:19], s[0:1], 0")
        a("v_readfirstlane_b32 s20, v0")
        a("v_and_b32 v1, 63, v0")
        a("s_and_b32 s21, s2, 7\ns_lshr_b32 s22, s2, 3")
        a("s_lshr_b32 s20, s20, 6")
        for srd, sz in ((24, 2097152), (28, 1835008), (32, 1835008), (36, WS_REC), (40, 2097152)):
            a(f"s_mov_b32 s{srd+2}, {sz}\ns_mov_b32 s{srd+3}, 0x20000")
        a("s_and_b32 s44, s21, 3\ns_lshl_b32 s44, s44, 2\ns_and_b32 s23, s22, 3\ns_add_u32 s44, s44, s23")
        a("s_lshr_b32 s45, s21, 2\ns_mul_i32 s45, s45, 7\ns_lshr_b32 s49, s22, 2\ns_add_u32 s45, s45, s49")
        a("s_add_u32 s49, s49, s23")
        a("v_lshlrev_b32 v11, 4, v1")
        a("v_lshrrev_b32 v2, 3, v1\nv_lshrrev_b32 v3, 4, v1\nv_and_b32 v4, 7, v1")
        a(f"v_xor_b32 v5, v4, v3\nv_lshlrev_b32 v5, 4, v5\nv_lshl_add_u32 v{V_XD}, v2, 10, v5")
        a(f"v_xor_b32 v{V_XD+1}, 64, v{V_XD}")
        a(f"v_add_u32 v{V_XD+1}, 7168, v{V_XD+1}\nv_add_u32 v{V_XD+2}, {2*7168}, v{V_XD}\nv_add_u32 v{V_XD+3}, {2*7168}, v{V_XD+1}")
        a("v_and_b32 v4, 15, v1\nv_lshlrev_b32 v5, 1, v3\nv_xor_b32 v4, v4, v5\nv_lshlrev_b32 v4, 4, v4")
        a(f"v_mul_u32_u24 v5, 3584, v3\nv_add_u32 v{V_WD}, v4, v5\nv_xor_b32 v4, 128, v4\nv_add_u32 v4, v4, v5")
        a(f"v_add_u32 v{V_WD+1}, {4*3584-1024}, v{V_WD}\nv_add_u32 v{V_WD+2}, {2*(4*3584-1024)}, v4\nv_add_u32 v{V_WD+3}, {3*(4*3584-1024)}, v4")
        a("s_lshl_b32 s50, s44, 17\ns_lshl_b32 s23, s20, 15\ns_add_u32 s50, s50, s23")
        a(f"s_mul_i32 s51, s20, {16*3584}\ns_lshl_b32 s23, s45, 8\ns_add_u32 s51, s51, s23")
        a("s_lshl_b32 s52, s20, 12")
        a("s_lshl_b32 s23, s45, 8\ns_lshr_b32 s53, s20, 1\ns_lshl_b32 s53, s53, 7\ns_add_u32 s23, s23, s53")
        a("v_lshl_add_u32 v6, v3, 3, s23")
        self.mod_small(60, 49, blocks(self.o.b1)[0])
        a("s_waitcnt lgkmcnt(0)")
        for srd, p in ((24, 4), (28, 6), (32, 10), (36, 18), (40, 14)):
            a(f"s_mov_b32 s{srd}, s{p}\ns_and_b32 s{srd+1}, s{p+1}, 0xffff")
    def p2_tile(self):
        a = self.a
        if self.o.t2 == 1:
            a("s_and_b32 s46, s21, 3\ns_lshl_b32 s46, s46, 3\ns_lshr_b32 s23, s21, 2\ns_lshl_b32 s23, s23, 2\ns_add_u32 s46, s46, s23")
            a("s_lshr_b32 s23, s22, 3\ns_add_u32 s46, s46, s23")
            a("s_and_b32 s47, s22, 7")
            a("s_add_u32 s63, s23, s47")
            a(f"s_mul_i32 s62, s21, {self.o.rqx}\ns_lshr_b32 s62, s62, 2")
        else:
            a("s_and_b32 s62, s21, 3\ns_lshl_b32 s46, s62, 3\ns_lshr_b32 s23, s22, 2\ns_add_u32 s46, s46, s23")
            a("s_and_b32 s63, s22, 3\ns_and_b32 s47, s21, 4\ns_add_u32 s47, s47, s63")
            a("s_add_u32 s63, s63, s23")
            a(f"s_mul_i32 s62, s62, {self.o.rqx}\ns_lshr_b32 s62, s62, 1")
    def b2_load(self):
        self.a("s_lshl_b32 s23, s47, 7\nv_and_b32 v9, 15, v0\nv_lshl_add_u32 v9, v9, 3, s23\nglobal_load_dwordx2 v[60:61], v9, s[12:13]"); self.vm.issue("b2")
    def chunk_entry(self, i):
        a = self.a
        base = 0
        for b, sz in enumerate(blocks(self.o.b1)):
            if i < base + sz: break
            base += sz
        il = i - base
        if il == 0 and i > 0: self.mod_small(60, 49, sz)
        d = CT[i]
        if sz in (1, 2, 4) and base % sz == 0:
            a(f"s_xor_b32 s{d}, s60, {i}"); return
        if il == 0:
            a(f"s_add_u32 s{d}, s60, {base}")
        else:
            a(f"s_add_u32 s{d}, s{CT[i-1]}, 1\ns_cmp_eq_u32 s{d}, {base+sz}\ns_cselect_b32 s{d}, {base}, s{d}")
    def p1_pieces(self, i):
        slot = (i % 5) * SLOT
        P = []
        for j in range(4):
            pre = f"s_lshl_b32 s53, s{CT[i]}, 7\ns_add_u32 m0, s52, {slot}\ns_add_u32 s53, s53, s50\n" if j == 0 else ""
            P.append((pre + f"buffer_load_dwordx4 v{V_XD+j}, s[24:27], s53 offen offset:{j*1024}{' nt' if 'x' in self.o.nt and i < self.o.ntn else ''} lds", f"c{i}"))
        for j in range(4):
            pre = f"s_mul_i32 s53, s{CT[i]}, {64*3584}\ns_add_u32 m0, s52, {slot+16384}\ns_add_u32 s53, s53, s51\n" if j == 0 else ""
            P.append((pre + f"buffer_load_dwordx4 v{V_WD+j}, s[28:31], s53 offen offset:{j*1024}{' nt' if 'w' in self.o.nt and i < self.o.ntn else ''} lds", f"c{i}"))
        return P
    def w2_pieces(self, q):
        P = []
        for j in range(4):
            pre = f"s_lshl_b32 s53, s{QT+q}, 5\ns_add_u32 m0, s57, {W2SLOT[q]*SLOT + (q&1)*4096}\ns_add_u32 s53, s53, s56\n" if j == 0 else ""
            P.append((pre + f"buffer_load_dwordx4 v{V_W2D+j}, s[32:35], s53 offen offset:{j*1024}{' nt' if '2' in self.o.nt else ''} lds", f"w{q}"))
        return P
    def emit(self, p):
        self.a(p[0]); self.vm.issue(p[1])
    def w2_dma(self, q):
        for p in self.w2_pieces(q): self.emit(p)
    def gtouch(self):
        a, o = self.a, self.o
        if not o.gt: return
        a("s_lshl_b32 s61, s22, 2\ns_add_u32 s61, s61, s20")
        if "x" in o.gt:
            a("s_and_b32 s23, s21, 3\ns_lshl_b32 s23, s23, 19\ns_lshr_b32 s55, s21, 2\ns_lshl_b32 s55, s55, 18\ns_add_u32 s23, s23, s55")
            a("s_lshl_b32 s55, s61, 11\ns_add_u32 s55, s55, s23\nv_and_b32 v9, 15, v1\nv_lshlrev_b32 v9, 7, v9")
            a("buffer_load_dword v56, v9, s[24:27], s55 offen"); self.vm.issue("gt")
        if "w" in o.gt:
            a("s_lshl_b32 s55, s61, 2\ns_and_b32 s23, s21, 3\ns_add_u32 s55, s55, s23\ns_mul_i32 s55, s55, 3584")
            a("s_lshr_b32 s23, s21, 2\ns_mul_i32 s23, s23, 1792\ns_add_u32 s55, s55, s23\nv_min_u32 v9, 13, v1\nv_lshlrev_b32 v9, 7, v9")
            a("buffer_load_dword v57, v9, s[28:31], s55 offen"); self.vm.issue("gt")
        if "2" in o.gt:
            if o.t2 == 2:
                a("s_mul_i32 s55, s61, 14\nv_min_u32 v9, 13, v1\nv_add_u32 v9, s55, v9\nv_lshrrev_b32 v10, 2, v9\nv_and_b32 v9, 3, v9")
                a("v_lshlrev_b32 v9, 7, v9\nv_lshl_add_u32 v9, v10, 10, v9")
                a(f"s_and_b32 s23, s21, 3\ns_mul_i32 s55, s23, {448*1024}\ns_and_b32 s23, s21, 4\ns_lshl_b32 s23, s23, 7\ns_add_u32 s55, s55, s23")
            else:
                a(f"s_lshl_b32 s55, s21, 7\ns_add_u32 s55, s55, s61\ns_mul_i32 s55, s55, {14*128}\nv_min_u32 v9, 13, v1\nv_lshlrev_b32 v9, 7, v9")
            a("buffer_load_dword v58, v9, s[32:35], s55 offen"); self.vm.issue("gt")
    def bias_load(self):
        for fi in range(4):
            self.a(f"global_load_dwordx2 v[{V_BRAW+2*fi}:{V_BRAW+2*fi+1}], v6, s[8:9] offset:{32*fi}"); self.vm.issue("b1")
    def bias_unpack(self):
        for i in range(8):
            self.a(f"v_lshlrev_b32 v{V_BIAS+2*i}, 16, v{V_BRAW+i}\nv_and_b32 v{V_BIAS+2*i+1}, 0xffff0000, v{V_BRAW+i}")
    def p1_addr_read(self):
        a = self.a
        a("v_and_b32 v2, 15, v1\nv_lshrrev_b32 v3, 4, v1\nv_bfe_u32 v4, v1, 1, 3")
        a("s_and_b32 s23, s20, 1\ns_lshl_b32 s23, s23, 13\nv_lshl_add_u32 v5, v2, 7, s23")
        for s in range(2):
            a(f"v_or_b32 v7, {4*s}, v3\nv_xor_b32 v7, v7, v4\nv_lshl_add_u32 v{V_XR+s}, v7, 4, v5")
        a("v_bfe_u32 v2, v1, 2, 2\nv_and_b32 v4, 3, v1\nv_bfe_u32 v5, v1, 4, 1")
        a("v_lshl_add_u32 v7, v3, 3, v2\nv_lshlrev_b32 v7, 8, v7\nv_lshl_add_u32 v7, v4, 3, v7")
        a("v_lshl_or_b32 v5, v5, 2, v2")
        a("s_and_b32 s23, s20, 2\ns_lshl_b32 s23, s23, 1")
        for f in range(4):
            a(f"s_or_b32 s53, s23, {f}\nv_xor_b32 v8, s53, v5\nv_lshl_add_u32 v{V_WR+f}, v8, 5, v7")
        for b in (1, 2):
            for s in range(2): a(f"v_add_u32 v{V_XR+2*b+s}, {b*65536}, v{V_XR+s}")
            for f in range(4): a(f"v_add_u32 v{V_WR+4*b+f}, {b*65536}, v{V_WR+f}")
    def w2_addr_dma(self):
        a = self.a
        a("v_lshrrev_b32 v2, 3, v1\nv_lshrrev_b32 v3, 4, v1\nv_and_b32 v4, 7, v1")
        a(f"v_lshlrev_b32 v5, 1, v3\nv_xor_b32 v4, v4, v5\nv_lshlrev_b32 v4, 4, v4\nv_lshl_add_u32 v{V_W2D}, v2, 10, v4")
        for j in range(1, 4): a(f"v_add_u32 v{V_W2D+j}, {j*7168}, v{V_W2D}")
        a(f"s_mul_i32 s56, s20, {448*1024}\ns_lshl_b32 s23, s47, 7\ns_add_u32 s56, s56, s23")
        a("s_lshl_b32 s57, s20, 13")
    def w2_addr_tr(self):
        a = self.a
        a("v_lshrrev_b32 v3, 4, v1\nv_bfe_u32 v2, v1, 2, 2\nv_and_b32 v4, 3, v1")
        a("v_lshl_add_u32 v7, v3, 2, v2\nv_bfe_u32 v5, v7, 1, 2\nv_lshlrev_b32 v7, 7, v7")
        a("v_lshl_add_u32 v7, v4, 3, v7\nv_add_u32 v7, s57, v7")
        a(f"v_lshl_add_u32 v{V_T2}, v5, 5, v7")
        for ni in range(1, 4): a(f"v_xor_b32 v{V_T2+ni}, {32*ni}, v{V_T2}")
        for b in (1, 2):
            for ni in range(4): a(f"v_add_u32 v{V_T2+4*b+ni}, {b*65536}, v{V_T2+ni}")
    def q_table(self, lo=0, hi=14):
        a, o = self.a, self.o
        if all(b == 1 for b in blocks(o.b2)):
            for q in range(lo, hi):
                if q == 0: a(f"s_lshl_b32 s{QT}, s62, 10")
                elif o.rqx == 0: a(f"s_movk_i32 s{QT+q}, {q*1024}")
                else: a(f"s_add_u32 s{QT+q}, s{QT+q-1}, 1024\ns_cmp_eq_u32 s{QT+q}, {14*1024}\ns_cselect_b32 s{QT+q}, 0, s{QT+q}")
            return
        base = 0
        for sz in blocks(o.b2):
            for il in range(sz):
                q = base + il
                if not lo <= q < hi: continue
                if sz in (1, 2, 4) and base % sz == 0 and o.rqx == 0:
                    if il == 0 or q == lo: a(f"s_and_b32 s61, s63, {sz-1}\ns_lshl_b32 s61, s61, 10")
                    a(f"s_xor_b32 s{QT+q}, s61, {q*1024}")
                    continue
                assert lo <= base and base + sz <= hi
                if il == 0:
                    self.mod_small(60, 63, sz); a(f"s_add_u32 s61, s60, {base}")
                else: a(f"s_add_u32 s61, s61, 1\ns_cmp_eq_u32 s61, {base+sz}\ns_cselect_b32 s61, {base}, s61")
                a(f"s_add_u32 s23, s61, s62\ns_cmp_ge_u32 s23, 14\ns_cselect_b32 s53, 14, 0\ns_sub_u32 s23, s23, s53\ns_lshl_b32 s{QT+q}, s23, 10")
            base += sz
        assert base == 14
    def poll_addr(self):
        a = self.a
        a(f"s_lshl_b32 s23, s46, 2\ns_add_u32 s23, s23, s20\ns_mul_i32 s23, s23, {7*128}\ns_add_u32 s23, s23, {FLAG_OFF}")
        a(f"v_min_u32 v{V_POLL}, 6, v1\nv_lshl_add_u32 v{V_POLL}, v{V_POLL}, 7, s23")
    def common_addr(self):
        a = self.a
        a(f"v_mov_b32 v{V_ZERO}, 0")
        for mi in range(1, 4): a(f"v_add_u32 v{26+mi}, {mi*56*1024}, v11")
    def prod_addr(self):
        a = self.a
        a("s_and_b32 s60, s20, 1\ns_lshl_b32 s61, s44, 1\ns_add_u32 s60, s60, s61\ns_mul_i32 s61, s60, 28")
        a("s_lshr_b32 s23, s20, 1\ns_lshl_b32 s53, s45, 1\ns_add_u32 s23, s23, s53\ns_add_u32 s61, s61, s23")
        a(f"s_lshl_b32 s61, s61, 7\ns_add_u32 s61, s61, {FLAG_OFF}\nv_lshl_add_u32 v{V_FLAG}, v1, 2, s61")
        a(f"s_mul_i32 s60, s60, {224*1024}\ns_lshl_b32 s23, s23, 11\ns_add_u32 s54, s60, s23")
    def hv(self, mi):
        return 11 if mi == 0 else 26 + mi

    def fr(self, n): return V_FR + 32 * (n % 2)
    def p1_reads(self, n):
        c, s = n // 2, n % 2
        slot = c % 5; b, so = slot // 2, (slot % 2) * SLOT
        f = self.fr(n)
        def B(mi): return (f"ds_read_b128 v[{f+16+4*mi}:{f+19+4*mi}], v{V_XR+2*b+s} offset:{so+mi*2048}", f"B{n}_{mi}")
        def A(fi): return [(f"ds_read_b64_tr_b16 v[{f+4*fi+2*h}:{f+4*fi+2*h+1}], v{V_WR+4*b+fi} offset:{so+16384+s*8192+h*1024}", f"A{n}_{fi}") for h in range(2)]
        return [B(0)] + A(0) + [B(1), B(2), B(3)] + A(1) + A(2) + A(3)
    def acc1(self, fi, mi): return V_ACC1 + 4 * (4 * fi + mi)
    def mfma1(self, n, fi, mi):
        f = self.fr(n); d = self.acc1(fi, mi)
        self.lg.wait([f"A{n}_{fi}", f"B{n}_{mi}"])
        cs = "0" if n == 0 else f"v[{d}:{d+3}]"
        self.a(f"{MF} v[{d}:{d+3}], v[{f+4*fi}:{f+4*fi+3}], v[{f+16+4*mi}:{f+19+4*mi}], {cs}")
    def epi_ops(self, u):
        L = []
        for mi in range(4):
            p = V_PK + 16 * u + 4 * mi
            for t in range(2):
                d = self.acc1(2 * u + t, mi)
                for i in range(4): L.append((f"v_max_f32 v{d+i}, 0, v{d+i}", None))
                for i in (0, 2): L.append((f"v_pk_mul_f32 v[{d+i}:{d+i+1}], v[{d+i}:{d+i+1}], v[{d+i}:{d+i+1}]", None))
                for i in (0, 2): L.append((f"v_cvt_pk_bf16_f32 v{p+2*t+i//2}, v{d+i}, v{d+i+1}", None))
            L.append((f"buffer_store_dwordx4 v[{p}:{p+3}], v{self.hv(mi)}, s[36:39], s54 offen offset:{u*1024} sc1", "hst"))
        return L
    def op(self, x):
        self.a(x[0])
        if x[1]: self.vm.issue(x[1])
    def all_pieces(self):
        P = []
        for i in range(8): P += self.p1_pieces(i)
        for q in range(self.o.w2early): P += self.w2_pieces(q)
        return P
    def p1_main(self):
        a, vm, lg, o = self.a, self.vm, self.lg, self.o
        P = self.P
        def due(slot, force=None, cap=10**6):
            while cap > 0 and self.pi < len(P) and (4 * self.pi - o.L <= slot or (force is not None and self.pi < force)):
                cap -= 1
                p = self.pi
                free_at = 32 * (p // 8 - 5 + 1) + 16 if p >= 40 else -10**9
                if slot < free_at: assert force is None or p >= force; break
                self.emit(P[p]); self.pi += 1
        due(-1, cap=o.upb - self.pi)
        vm.wait("c0")
        self.stamp()
        a("s_barrier")
        for r in self.p1_reads(0): a(r[0]); lg.issue(r[1])
        slot = 0
        badd = []
        last = 14 if o.stag else 16
        for n in range(last):
            c, s = n // 2, n % 2
            if s == 1 and c < 7:
                due(slot - 1, force=8 * (c + 2))
                vm.wait(f"c{c+1}")
                a("s_barrier")
                if o.cst: self.stamp()
            if n == o.biasn - 1:
                vm.wait("b1")
                n0 = len(a.lines); self.bias_unpack(); self.fill = a.lines[n0:] + self.fill; a.lines = a.lines[:n0]
            R = self.p1_reads(n + 1) if n + 1 < 16 else []
            order = [(fi, mi if fi % 2 == 0 else 3 - mi) for fi in range(4) for mi in range(4)]
            for k, (fi, mi) in enumerate(order):
                self.mfma1(n, fi, mi)
                if n == 15 and k == 12: a("s_barrier")
                if k < 12 and R:
                    r = R.pop(0); a(r[0]); lg.issue(r[1])
                if slot % o.cad == o.cad - 1: due(slot, cap=1)
                if o.biasn <= n < o.biasn + 4: badd.append((slot + 9, fi, mi, n - o.biasn))
                while badd and badd[0][0] <= slot:
                    _, f2, m2, h = badd.pop(0); d = self.acc1(f2, m2)
                    a(f"v_add_f32 v{d+h}, v{d+h}, v{V_BIAS+4*f2+h}")
                if n >= o.defer or n == o.biasn - 1: self.filler(1)
                slot += 1
            if n == 9: self.filler(10000)
        if not o.stag:
            self.stamp()
            due(10**6)
            a("s_nop 4")
            return self.epi_ops(0) + self.epi_ops(1)
        R = self.p1_reads(15)
        seq0 = [(n, fi, mi if fi % 2 == 0 else 3 - mi) for n in (14, 15) for fi in (0, 1) for mi in range(4)]
        seq1 = [(n, fi, mi if fi % 2 == 0 else 3 - mi) for n in (14, 15) for fi in (2, 3) for mi in range(4)]
        for k, (n, fi, mi) in enumerate(seq0):
            self.mfma1(n, fi, mi)
            for _ in range(2 if k < 4 else 1):
                if R:
                    r = R.pop(0); a(r[0]); lg.issue(r[1])
            if k >= 8: due(slot)
            slot += 1
        due(10**6)
        E = self.epi_ops(0)
        for k, (n, fi, mi) in enumerate(seq1):
            self.mfma1(n, fi, mi)
            if k == 12: a("s_barrier")
            if k == 0: a("s_nop 2")
            if k >= 1:
                for _ in range(o.epr):
                    if E: self.op(E.pop(0))
        self.stamp()
        if len(E) < 8: a("s_nop 7")
        return E + self.epi_ops(1)
    def w2_tr_list(self, q):
        slot = W2SLOT[q]; b, so = slot // 2, (slot % 2) * SLOT + (q & 1) * 4096
        return [f"ds_read_b64_tr_b16 a[{16*q+4*ni+2*h}:{16*q+4*ni+2*h+1}], v{V_T2+4*b+ni} offset:{so+h*2048}" for ni in range(4) for h in range(2)]
    def w2_tr(self, q):
        self.vm.wait(f"w{q}")
        for l in self.w2_tr_list(q): self.a(l)
    def get_tag(self, lbl, first_done):
        a = self.a
        if not first_done:
            a(f"global_load_dword v{V_TAG}, v{V_ZERO}, s[16:17] sc1\ns_waitcnt vmcnt(0)")
        a(f"s_mov_b32 s23, {SPIN}")
        a(f"{lbl}_chk:\nv_readfirstlane_b32 s48, v{V_TAG}\ns_nop 0\ns_cmp_lg_u32 s48, 0\ns_cbranch_scc1 {lbl}_ok")
        a(f"s_sub_u32 s23, s23, 1\ns_cmp_eq_u32 s23, 0\ns_cbranch_scc1 {lbl}_ok")
        a(f"s_sleep 1\nglobal_load_dword v{V_TAG}, v{V_ZERO}, s[16:17] sc1\ns_waitcnt vmcnt(0)\ns_branch {lbl}_chk")
        a(f"{lbl}_ok:")
    def poll(self):
        a, o = self.a, self.o
        late = list(range(14 - o.late, 14))
        self.vm.q = []
        a(f"s_waitcnt lgkmcnt(0)\nglobal_load_dword v{V_PV}, v{V_POLL}, s[18:19] sc1"); self.vm.issue("poll")
        for q in late: self.w2_dma(q)
        a(f"s_mov_b32 s23, {SPIN}")
        self.vm.wait("poll")
        a(f"L_poll_chk:\nv_cmp_ne_u32 vcc, s48, v{V_PV}\ns_sub_u32 s23, s23, 1\ns_cmp_eq_u32 s23, 0\ns_cbranch_scc1 L_poll_ok\ns_nop 1\ns_cbranch_vccz L_poll_ok")
        a(f"s_sleep {o.psleep}\nglobal_load_dword v{V_PV}, v{V_POLL}, s[18:19] sc1\ns_waitcnt vmcnt(0)\ns_branch L_poll_chk")
        a("L_poll_ok:")

    def p2_setup(self):
        a = self.a
        a("v_and_b32 v8, 15, v1\nv_lshrrev_b32 v9, 4, v1\nv_and_b32 v10, 7, v1")
        a("v_xor_b32 v9, v9, v10\nv_lshlrev_b32 v9, 4, v9\nv_lshl_add_u32 v9, v8, 8, v9\nv_add_u32 v2, s57, v9\nv_xor_b32 v3, 64, v2")
        a("v_lshrrev_b32 v8, 4, v0\nv_and_b32 v9, 15, v0\nv_and_b32 v10, 7, v8")
        a("v_xor_b32 v10, v10, v9\nv_lshlrev_b32 v10, 4, v10\nv_lshl_add_u32 v6, v8, 8, v10")
        a("s_lshl_b32 s23, s46, 16\ns_lshl_b32 s53, s47, 7\ns_add_u32 s58, s23, s53")
        a("v_lshlrev_b32 v7, 10, v8\nv_lshl_add_u32 v7, v9, 3, v7")
        a("v_lshlrev_b32 v12, 16, v60\nv_and_b32 v13, 0xffff0000, v60\nv_lshlrev_b32 v14, 16, v61\nv_and_b32 v15, 0xffff0000, v61")
        a(f"s_mul_i32 s59, s46, {224*1024}\ns_mul_i32 s23, s20, {14*1024}\ns_add_u32 s59, s59, s23")
    def hreg(self, s, mi):
        q = (4 * s + mi) % 44
        return f"v[{96+4*q}:{99+4*q}]" if q < 36 else f"a[{224+4*(q-36)}:{227+4*(q-36)}]"
    def acc2(self, ni, mi): return 32 + 4 * (4 * ni + mi)
    def p2_load_ops(self, s):
        L = []
        for mi in range(4):
            pre = f"s_add_u32 s60, s59, s{QT+s}\n" if mi == 0 else ""
            L.append((pre + f"buffer_load_dwordx4 {self.hreg(s, mi)}, v{self.hv(mi)}, s[36:39], s60 offen sc1", f"h{s}_{mi}"))
        return L
    def mfma2(self, s, ni, mi):
        d = self.acc2(ni, mi)
        self.vm.wait(f"h{s}_{mi}")
        cs = "0" if s == 0 else f"v[{d}:{d+3}]"
        self.a(f"{MF} v[{d}:{d+3}], a[{16*s+4*ni}:{16*s+4*ni+3}], {self.hreg(s, mi)}, {cs}")
    def red_write(self, ni, mi):
        d = self.acc2(ni, mi)
        return f"ds_write_b128 v{2+(ni&1)}, v[{d}:{d+3}] offset:{(ni>>1)*128+(mi&1)*4096+(mi>>1)*32768}"
    def p2_main(self):
        a, vm, o = self.a, self.vm, self.o
        for s in range(o.hup):
            for p in self.p2_load_ops(s): self.emit(p)
        nxt = o.hup; pend = []
        trq = []
        for q in range(14 - o.late - o.trlate, 14): trq += self.w2_tr_list(q)
        first_late = 14 - o.late - o.trlate
        tail = o.tail
        for s in range(14 - tail):
            if nxt < 14 and nxt - 11 < s:
                pend += self.p2_load_ops(nxt); nxt += 1
            if s == 14 - tail - 1:
                while nxt < 14: pend += self.p2_load_ops(nxt); nxt += 1
            order = [(ni if mi % 2 == 0 else 3 - ni, mi) for mi in range(4) for ni in range(4)]
            if s == first_late:
                assert not trq
                a("s_waitcnt lgkmcnt(0)")
            for k, (ni, mi) in enumerate(order):
                self.mfma2(s, ni, mi)
                if s == 0 and k == 0: self.stamp()
                if trq and (k % 2 == 0 or o.late + o.trlate > 6): a(trq.pop(0))
                if pend and (k % 4 == 3 or len(pend) > 4): self.emit(pend.pop(0))
            assert not pend or s < 14 - tail - 1 or True
        while pend: self.emit(pend.pop(0))
        tiles = [(ni if mi % 2 == 0 else 3 - ni, mi) for mi in range(4) for ni in range(4)]
        assert not trq
        if first_late >= 14 - tail: a("s_waitcnt lgkmcnt(0)")
        if tail:
            lag = -(-8 // tail) + 1
            for t, (ni, mi) in enumerate(tiles):
                for s in range(14 - tail, 14): self.mfma2(s, ni, mi)
                if t >= lag: a(self.red_write(*tiles[t - lag]))
            self.stamp()
            a("s_nop 7")
            for t in range(16 - lag, 16): a(self.red_write(*tiles[t]))
        else:
            self.stamp()
            a("s_nop 7")
            for t in tiles: a(self.red_write(*t))
    def p2_final(self):
        a = self.a
        a("s_waitcnt lgkmcnt(0)\ns_barrier")
        for i in range(4):
            for src in range(4):
                r = 96 + 16 * i + 4 * src
                a(f"ds_read_b128 v[{r}:{r+3}], v6 offset:{src*8192+(i>>1)*32768+(i&1)*4096}")
        for i in range(4):
            r = 96 + 16 * i
            a(f"s_waitcnt lgkmcnt({12-4*i})")
            for h in (0, 2):
                a(f"v_pk_add_f32 v[{r+h}:{r+h+1}], v[{r+h}:{r+h+1}], v[{r+4+h}:{r+5+h}]")
                a(f"v_pk_add_f32 v[{r+8+h}:{r+9+h}], v[{r+8+h}:{r+9+h}], v[{r+12+h}:{r+13+h}]")
            for h in (0, 2):
                a(f"v_pk_add_f32 v[{r+h}:{r+h+1}], v[{r+h}:{r+h+1}], v[{12+h}:{13+h}]")
            for h in (0, 2):
                a(f"v_pk_add_f32 v[{r+h}:{r+h+1}], v[{r+h}:{r+h+1}], v[{r+8+h}:{r+9+h}]")
            a(f"v_cvt_pk_bf16_f32 v{r+4}, v{r}, v{r+1}\nv_cvt_pk_bf16_f32 v{r+5}, v{r+2}, v{r+3}")
            a(f"s_add_u32 s53, s58, {i*16*1024}")
            a(f"buffer_store_dwordx2 v[{r+4}:{r+5}], v7, s[40:43], s53 offen {self.o.outsc}")
    def idle_early(self):
        a, o, vm = self.a, self.o, self.vm
        if o.ct:
            a("s_getpc_b64 s[60:61]\nL_pc:\ns_sub_u32 s60, s60, L_pc-" + NAME + "_kernel\ns_subb_u32 s61, s61, 0")
            a("s_sub_u32 s23, s22, 28\ns_lshl_b32 s23, s23, 12\nv_lshl_add_u32 v2, v0, 4, s23\nv_and_b32 v2, 0xffffffc0, v2")
            a("v_min_u32 v2, L_end-" + NAME + "_kernel, v2\nglobal_load_dword v59, v2, s[60:61]")
        a("s_sub_u32 s60, s22, 28\ns_lshl_b32 s60, s60, 2\ns_add_u32 s60, s60, s20")
        if o.ip:
            a("s_and_b32 s23, s21, 3\ns_lshl_b32 s61, s23, 19\ns_lshr_b32 s55, s21, 2\ns_lshl_b32 s53, s55, 18\ns_add_u32 s61, s61, s53")
            a("s_lshl_b32 s53, s60, 14\ns_add_u32 s61, s61, s53\nv_and_b32 v35, 15, v1\nv_lshlrev_b32 v35, 10, v35")
            a("s_lshl_b32 s53, s60, 2\ns_add_u32 s53, s53, s23\ns_mul_i32 s53, s53, 3584\ns_mul_i32 s55, s55, 1792\ns_add_u32 s55, s55, s53")
            a("v_min_u32 v36, 13, v1\nv_lshlrev_b32 v36, 7, v36")
            def w2touch():
                if o.t2 == 2:
                    a("v_lshrrev_b32 v37, 3, v1\nv_lshlrev_b32 v37, 15, v37\nv_bfe_u32 v38, v1, 2, 1\nv_lshl_add_u32 v37, v38, 10, v37")
                    a("v_and_b32 v38, 3, v1\nv_lshl_add_u32 v37, v38, 7, v37")
                    a(f"s_mul_i32 s53, s23, {448*1024}\ns_lshl_b32 s58, s60, 11\ns_add_u32 s53, s53, s58\ns_and_b32 s58, s21, 4\ns_lshl_b32 s58, s58, 7\ns_add_u32 s53, s53, s58")
                else:
                    a("v_lshrrev_b32 v37, 3, v1\nv_lshlrev_b32 v37, 15, v37\nv_and_b32 v38, 7, v1\nv_lshl_add_u32 v37, v38, 7, v37")
                    a(f"s_mul_i32 s53, s23, {448*1024}\ns_lshl_b32 s58, s60, 10\ns_add_u32 s53, s53, s58\ns_and_b32 s58, s21, 4\ns_lshl_b32 s58, s58, 12\ns_add_u32 s53, s53, s58")
                a("buffer_load_dword v42, v37, s[32:35], s53 offen")
                a(f"v_cmp_gt_u32 vcc, {6*32768}, v37\ns_add_u32 s53, s53, {8*32768}\ns_nop 1\nv_cndmask_b32 v37, 0, v37, vcc")
                a("buffer_load_dword v43, v37, s[32:35], s53 offen")
            for c in range(o.ip0, 9):
                if c == o.ip2 and "2" in o.ip: w2touch()
                if c == 8 or "x" not in o.ip: continue
                a(f"s_add_u32 s53, s55, {c*64*3584}")
                a(f"buffer_load_dword v40, v35, s[24:27], s61 offen offset:{c*128}")
                a(f"buffer_load_dword v41, v36, s[28:31], s53 offen")
    def idle_path(self):
        a, o, vm = self.a, self.o, self.vm
        a("s_cmp_eq_u32 s2, 224\ns_cselect_b32 s23, s20, 1\ns_cmp_lg_u32 s23, 0\ns_cbranch_scc1 L_nopub")
        a(f"v_mov_b32 v32, {EPOCH_OFF}\nglobal_load_dword v33, v32, s[18:19]\ns_waitcnt vmcnt(0)")
        a("v_add_u32 v33, 0x2468ace, v33\nv_or_b32 v33, 1, v33\ns_mov_b64 exec, 1")
        a(f"global_store_dword v{V_ZERO}, v33, s[16:17] sc1\nglobal_store_dword v32, v33, s[18:19] sc1\ns_mov_b64 exec, -1")
        a("L_nopub:")
        vm.q = []
        nl = 14 - o.late
        for q in range(min(10, nl)): self.w2_dma(q)
        for q in range(nl - o.trlate):
            self.w2_tr(q)
            if q == 0: self.p2_setup()
            if q in (1, 3):
                a("s_waitcnt lgkmcnt(0)")
                for qq in (9 + q, 10 + q):
                    if qq < nl: self.w2_dma(qq)
        self.get_tag("L_tagi", False)
        vm.q = []

def gen(o):
    k = G(o); a = k.a; vm = k.vm
    k.prologue()
    a("s_cmp_ge_u32 s22, 28\ns_cbranch_scc1 L_idle")
    k.chunk_entry(0); k.chunk_entry(1)
    k.P = k.all_pieces(); k.pi = 0
    for p in k.P[:8]: k.emit(p)
    k.bias_load()
    for p in k.P[8:o.upa]: k.emit(p)
    k.pi = o.upa
    a("s_branch L_act")
    a("L_idle:")
    k.idle_early()
    a("s_branch L_idle2")
    a("L_act:")
    n1 = len(a.lines)
    k.chunk_entry(2)
    k.p1_addr_read()
    k.p2_tile(); k.b2_load()
    n0 = len(a.lines)
    for i in range(3, 8): k.chunk_entry(i)
    k.w2_addr_dma(); k.q_table(0, 6); k.common_addr(); k.prod_addr()
    a.lines[n1:] = [l.replace("s53", "s55") for l in a.lines[n1:]]
    if o.defer < 16:
        k.fill = a.lines[n0:]
        a.lines = a.lines[:n0]
    E = k.p1_main()
    ntr = min(o.w2early, o.trearly)
    ex = []
    if ntr:
        vm.wait(f"w{ntr-1}")
        for q in range(ntr): ex += k.w2_tr_list(q)
    step = max(1, len(E) // max(1, len(ex)))
    for i, x in enumerate(E):
        k.op(x)
        if ex and i % step == step - 1: a(ex.pop(0))
    for e in ex: a(e)
    a(f"global_load_dword v{V_TAG}, v{V_ZERO}, s[16:17] sc1"); vm.issue("tag")
    k.stamp()
    nq = o.w2early
    for _ in range(o.w2mid):
        if nq < 10: k.w2_dma(nq); nq += 1
    done = ntr
    k.w2_addr_tr(); k.q_table(6, 14); k.poll_addr()
    k.p2_setup()
    while done < o.w2early: k.w2_tr(done); done += 1
    vm.wait("tag")
    k.get_tag("L_taga", True)
    a(f"{'s_mov_b64 exec, 1' if o.fl == 0 else 's_mov_b32 exec_hi, 0'}\nglobal_store_dword v{V_FLAG}, v{V_TAG}, s[18:19] sc1\ns_mov_b64 exec, -1"); vm.issue("flag")
    k.stamp()
    nl = 14 - o.late
    while nq < min(10, nl): k.w2_dma(nq); nq += 1
    while nq < nl:
        need = (nq - 10 + 1) | 1
        while done <= need: k.w2_tr(done); done += 1
        a("s_waitcnt lgkmcnt(0)")
        k.w2_dma(nq); nq += 1
        if nq < nl: k.w2_dma(nq); nq += 1
    while done < nl - o.trlate: k.w2_tr(done); done += 1
    a("s_branch L_join")
    nst = k.nst
    a("L_idle2:")
    k.p2_tile(); k.b2_load(); k.w2_addr_dma(); k.common_addr(); k.q_table(); k.w2_addr_tr(); k.poll_addr()
    k.nst = 1 if o.stamps else 0
    k.idle_path()
    while k.nst < nst: k.stamp()
    a("L_join:")
    k.stamp()
    k.poll()
    k.stamp()
    k.p2_main()
    k.p2_final()
    if o.stamps:
        a("s_waitcnt vmcnt(0)")
        k.stamp()
        a("s_lshl_b32 s23, s2, 2\ns_add_u32 s23, s23, s20")
        stamp_flush(a, k.nst, 18, 23, base=STB)
    a("L_end:\ns_endpgm")
    return kernel_file([dict(name=NAME + "_kernel", grid=256, block=256, lds=160*1024, body=a.text(), vgpr=512, accum=256, sgpr=102)], single=True)

def parser():
    ap = argparse.ArgumentParser()
    ap.add_argument("out")
    ap.add_argument("--stamps", action="store_true")
    ap.add_argument("--b1", default="2,2,2,2")
    ap.add_argument("--b2", default="2,2,2,2,2,2,2")
    ap.add_argument("--up", type=int, default=2)
    ap.add_argument("--dist", type=int, default=3)
    ap.add_argument("--stag", type=int, default=1)
    ap.add_argument("--epr", type=int, default=2)
    ap.add_argument("--w2early", type=int, default=6)
    ap.add_argument("--trearly", type=int, default=0)
    ap.add_argument("--w2mid", type=int, default=0)
    ap.add_argument("--rqx", type=int, default=0)
    ap.add_argument("--help1", default="")
    ap.add_argument("--pf2", type=int, default=0)
    ap.add_argument("--hup", type=int, default=3)
    ap.add_argument("--tail", type=int, default=1)
    ap.add_argument("--outsc", default="sc1")
    ap.add_argument("--t2", type=int, default=2)
    ap.add_argument("--gt", default="")
    ap.add_argument("--cst", type=int, default=0)
    ap.add_argument("--fl", type=int, default=1)
    ap.add_argument("--late", type=int, default=2)
    ap.add_argument("--trlate", type=int, default=2)
    ap.add_argument("--psleep", type=int, default=8)
    ap.add_argument("--ct", type=int, default=1)
    ap.add_argument("--ip2", type=int, default=8)
    ap.add_argument("--biaspos", type=int, default=1)
    ap.add_argument("--ip", default="x2")
    ap.add_argument("--ip0", type=int, default=2)
    ap.add_argument("--gtpos", type=int, default=1)
    ap.add_argument("--defer", type=int, default=16)
    ap.add_argument("--L", type=int, default=80)
    ap.add_argument("--upa", type=int, default=10)
    ap.add_argument("--nt", default="")
    ap.add_argument("--ntn", type=int, default=8)
    ap.add_argument("--upb", type=int, default=20)
    ap.add_argument("--cad", type=int, default=1)
    ap.add_argument("--biasn", type=int, default=3)
    return ap
if __name__ == "__main__":
    o = parser().parse_args()
    open(o.out, "w").write(gen(o))
```

```python
import sys, argparse
from ag import *
from gen import Cnt

H_BYTES = 128 * 56 * 1024
FLAG_OFF = H_BYTES
EPOCH_OFF = H_BYTES + 0x20000
WS_REC = H_BYTES + 0x30000
SLOT = 32768
STB = 78
QT = 64
CT = [4, 5, 6, 7, 10, 11, 14, 15]
SPIN = 0x40000
MF = "v_mfma_f32_16x16x32_bf16"
V_XD, V_WD, V_W2D = 12, 16, 20
V_BIAS, V_BRAW = 32, 48
V_ACC1 = 64
V_FR = 128
V_PK = 192
V_XR, V_WR = 224, 230
V_T2 = 244
V_TAG, V_ZERO = 30, 31
V_FLAG, V_POLL, V_PV = 24, 25, 26
W2SLOT = [3, 3, 4, 4, 0, 0, 1, 1, 2, 2, 3, 3, 4, 4]

def blocks(spec):
    return [int(x) for x in spec.split(",")]

class G:
    def __init__(self, o):
        self.o = o
        self.a = Asm()
        self.vm = Cnt(self.a, "vmcnt", 63)
        self.lg = Cnt(self.a, "lgkmcnt", 15)
        self.nst = 0
        self.fill = []
    def filler(self, n):
        while n > 0 and self.fill:
            l = self.fill.pop(0); self.a(l); n -= 1
            while "s_cmp" in l or (self.fill and "s_cselect" in self.fill[0]):
                l = self.fill.pop(0); self.a(l)
    def stamp(self):
        if self.o.stamps and self.nst < 12:
            stamp(self.a, self.nst, STB); self.nst += 1
    def mod_small(self, dst, src, m):
        a = self.a
        if m == 1: a(f"s_mov_b32 s{dst}, 0")
        elif m in (2, 4, 8): a(f"s_and_b32 s{dst}, s{src}, {m-1}")
        else:
            mul = {3: 11, 5: 13, 6: 11, 7: 10}[m]; sh = {3: 5, 5: 6, 6: 6, 7: 6}[m]
            for v in range(11): assert (v * mul) >> sh == v // m
            a(f"s_mul_i32 s{dst}, s{src}, {mul}\ns_lshr_b32 s{dst}, s{dst}, {sh}\ns_mul_i32 s{dst}, s{dst}, {m}\ns_sub_u32 s{dst}, s{src}, s{dst}")

    def prologue(self):
        a = self.a
        self.stamp()
        a("s_cmp_ge_u32 s2, 256\ns_cbranch_scc1 L_end")
        a("s_load_dwordx16 s[4:19], s[0:1], 0")
        a("v_readfirstlane_b32 s20, v0")
        a("v_and_b32 v1, 63, v0")
        a("s_and_b32 s21, s2, 7\ns_lshr_b32 s22, s2, 3")
        a("s_lshr_b32 s20, s20, 6")
        for srd, sz in ((24, 2097152), (28, 1835008), (32, 1835008), (36, WS_REC), (40, 2097152)):
            a(f"s_mov_b32 s{srd+2}, {sz}\ns_mov_b32 s{srd+3}, 0x20000")
        a("s_and_b32 s44, s21, 3\ns_lshl_b32 s44, s44, 2\ns_and_b32 s23, s22, 3\ns_add_u32 s44, s44, s23")
        a("s_lshr_b32 s45, s21, 2\ns_mul_i32 s45, s45, 7\ns_lshr_b32 s49, s22, 2\ns_add_u32 s45, s45, s49")
        a("s_add_u32 s49, s49, s23")
        a("v_lshlrev_b32 v11, 4, v1")
        a("v_lshrrev_b32 v2, 3, v1\nv_lshrrev_b32 v3, 4, v1\nv_and_b32 v4, 7, v1")
        a(f"v_xor_b32 v5, v4, v3\nv_lshlrev_b32 v5, 4, v5\nv_lshl_add_u32 v{V_XD}, v2, 10, v5")
        a(f"v_xor_b32 v{V_XD+1}, 64, v{V_XD}")
        a(f"v_add_u32 v{V_XD+1}, 7168, v{V_XD+1}\nv_add_u32 v{V_XD+2}, {2*7168}, v{V_XD}\nv_add_u32 v{V_XD+3}, {2*7168}, v{V_XD+1}")
        a("v_and_b32 v4, 15, v1\nv_lshlrev_b32 v5, 1, v3\nv_xor_b32 v4, v4, v5\nv_lshlrev_b32 v4, 4, v4")
        a(f"v_mul_u32_u24 v5, 3584, v3\nv_add_u32 v{V_WD}, v4, v5\nv_xor_b32 v4, 128, v4\nv_add_u32 v4, v4, v5")
        a(f"v_add_u32 v{V_WD+1}, {4*3584-1024}, v{V_WD}\nv_add_u32 v{V_WD+2}, {2*(4*3584-1024)}, v4\nv_add_u32 v{V_WD+3}, {3*(4*3584-1024)}, v4")
        a("s_lshl_b32 s50, s44, 17\ns_lshl_b32 s23, s20, 15\ns_add_u32 s50, s50, s23")
        a(f"s_mul_i32 s51, s20, {16*3584}\ns_lshl_b32 s23, s45, 8\ns_add_u32 s51, s51, s23")
        a("s_lshl_b32 s52, s20, 12")
        a("s_lshl_b32 s23, s45, 8\ns_lshr_b32 s53, s20, 1\ns_lshl_b32 s53, s53, 7\ns_add_u32 s23, s23, s53")
        a("v_lshl_add_u32 v6, v3, 3, s23")
        self.mod_small(60, 49, blocks(self.o.b1)[0])
        a("s_waitcnt lgkmcnt(0)")
        for srd, p in ((24, 4), (28, 6), (32, 10), (36, 18), (40, 14)):
            a(f"s_mov_b32 s{srd}, s{p}\ns_and_b32 s{srd+1}, s{p+1}, 0xffff")
    def p2_tile(self, idle=False):
        a = self.a
        if self.o.t2 == 3:
            a("s_and_b32 s46, s21, 3\ns_lshl_b32 s46, s46, 3\ns_lshr_b32 s23, s21, 2\ns_lshl_b32 s23, s23, 2\ns_add_u32 s46, s46, s23")
            if idle:
                a("s_sub_u32 s23, s22, 28\ns_mov_b32 s47, 3")
            else:
                a("s_mul_i32 s23, s22, 37\ns_lshr_b32 s23, s23, 8\ns_mul_i32 s47, s23, 7\ns_sub_u32 s47, s22, s47")
                a("s_cmp_ge_u32 s47, 3\ns_addc_u32 s47, s47, 0")
            a("s_add_u32 s46, s46, s23\ns_add_u32 s63, s23, s47\ns_mov_b32 s62, 0")
        elif self.o.t2 == 1:
            a("s_and_b32 s46, s21, 3\ns_lshl_b32 s46, s46, 3\ns_lshr_b32 s23, s21, 2\ns_lshl_b32 s23, s23, 2\ns_add_u32 s46, s46, s23")
            a("s_lshr_b32 s23, s22, 3\ns_add_u32 s46, s46, s23")
            a("s_and_b32 s47, s22, 7")
            a("s_add_u32 s63, s23, s47")
            a(f"s_mul_i32 s62, s21, {self.o.rqx}\ns_lshr_b32 s62, s62, 2")
        else:
            a("s_and_b32 s62, s21, 3\ns_lshl_b32 s46, s62, 3\ns_lshr_b32 s23, s22, 2\ns_add_u32 s46, s46, s23")
            a("s_and_b32 s63, s22, 3\ns_and_b32 s47, s21, 4\ns_add_u32 s47, s47, s63")
            a("s_add_u32 s63, s63, s23")
            a(f"s_mul_i32 s62, s62, {self.o.rqx}\ns_lshr_b32 s62, s62, 1")
    def w2t_addr(self):
        a, o = self.a, self.o
        if not o.wtn: return
        L = -(-o.wtn * 1024 // 112)
        assert L <= 64
        a(f"s_lshl_b32 s23, s22, 2\ns_add_u32 s23, s23, s20\ns_mul_i32 s23, s23, {L}")
        a(f"v_min_u32 v2, {L-1}, v1\nv_add_u32 v2, s23, v2\nv_min_u32 v2, {o.wtn*1024-1}, v2")
        a(f"v_bfe_u32 v3, v2, 8, 2\nv_mul_u32_u24 v3, 448, v3\nv_lshrrev_b32 v4, 10, v2\nv_lshl_add_u32 v3, v4, 5, v3")
        a(f"v_bfe_u32 v4, v2, 3, 5\nv_add_u32 v3, v3, v4\nv_and_b32 v2, 7, v2\nv_lshlrev_b32 v2, 7, v2\nv_lshl_add_u32 v62, v3, 10, v2")
        a(f"v_add_u32 v62, {o.wt0*32768}, v62")
    def w2t(self):
        if self.o.wtn:
            self.a("buffer_load_dword v63, v62, s[32:35], 0 offen"); self.vm.issue("wt")
    def b2_load(self):
        self.a("s_lshl_b32 s23, s47, 7\nv_and_b32 v9, 15, v0\nv_lshl_add_u32 v9, v9, 3, s23\nglobal_load_dwordx2 v[60:61], v9, s[12:13]"); self.vm.issue("b2")
    def chunk_entry(self, i):
        a = self.a
        base = 0
        for b, sz in enumerate(blocks(self.o.b1)):
            if i < base + sz: break
            base += sz
        il = i - base
        if il == 0 and i > 0: self.mod_small(60, 49, sz)
        d = CT[i]
        if sz in (1, 2, 4) and base % sz == 0:
            a(f"s_xor_b32 s{d}, s60, {i}"); return
        if il == 0:
            a(f"s_add_u32 s{d}, s60, {base}")
        else:
            a(f"s_add_u32 s{d}, s{CT[i-1]}, 1\ns_cmp_eq_u32 s{d}, {base+sz}\ns_cselect_b32 s{d}, {base}, s{d}")
    def p1_pieces(self, i):
        slot = (i % 5) * SLOT
        P = []
        for j in range(4):
            pre = f"s_lshl_b32 s53, s{CT[i]}, 7\ns_add_u32 m0, s52, {slot}\ns_add_u32 s53, s53, s50\n" if j == 0 else ""
            P.append((pre + f"buffer_load_dwordx4 v{V_XD+j}, s[24:27], s53 offen offset:{j*1024}{' nt' if 'x' in self.o.nt and i < self.o.ntn else ''} lds", f"c{i}"))
        for j in range(4):
            pre = f"s_mul_i32 s53, s{CT[i]}, {64*3584}\ns_add_u32 m0, s52, {slot+16384}\ns_add_u32 s53, s53, s51\n" if j == 0 else ""
            P.append((pre + f"buffer_load_dwordx4 v{V_WD+j}, s[28:31], s53 offen offset:{j*1024}{' nt' if 'w' in self.o.nt and i < self.o.ntn else ''} lds", f"c{i}"))
        return P
    def w2_pieces(self, q):
        P = []
        for j in range(4):
            pre = f"s_lshl_b32 s53, s{QT+q}, 5\ns_add_u32 m0, s57, {W2SLOT[q]*SLOT + (q&1)*4096}\ns_add_u32 s53, s53, s56\n" if j == 0 else ""
            P.append((pre + f"buffer_load_dwordx4 v{V_W2D+j}, s[32:35], s53 offen offset:{j*1024}{' nt' if '2' in self.o.nt else ''} lds", f"w{q}"))
        return P
    def emit(self, p):
        self.a(p[0]); self.vm.issue(p[1])
    def w2_dma(self, q):
        for p in self.w2_pieces(q): self.emit(p)
    def gtouch(self):
        a, o = self.a, self.o
        if not o.gt: return
        a("s_lshl_b32 s61, s22, 2\ns_add_u32 s61, s61, s20")
        if "x" in o.gt:
            a("s_and_b32 s23, s21, 3\ns_lshl_b32 s23, s23, 19\ns_lshr_b32 s55, s21, 2\ns_lshl_b32 s55, s55, 18\ns_add_u32 s23, s23, s55")
            a("s_lshl_b32 s55, s61, 11\ns_add_u32 s55, s55, s23\nv_and_b32 v9, 15, v1\nv_lshlrev_b32 v9, 7, v9")
            a("buffer_load_dword v56, v9, s[24:27], s55 offen"); self.vm.issue("gt")
        if "w" in o.gt:
            a("s_lshl_b32 s55, s61, 2\ns_and_b32 s23, s21, 3\ns_add_u32 s55, s55, s23\ns_mul_i32 s55, s55, 3584")
            a("s_lshr_b32 s23, s21, 2\ns_mul_i32 s23, s23, 1792\ns_add_u32 s55, s55, s23\nv_min_u32 v9, 13, v1\nv_lshlrev_b32 v9, 7, v9")
            a("buffer_load_dword v57, v9, s[28:31], s55 offen"); self.vm.issue("gt")
        if "2" in o.gt:
            if o.t2 == 2:
                a("s_mul_i32 s55, s61, 14\nv_min_u32 v9, 13, v1\nv_add_u32 v9, s55, v9\nv_lshrrev_b32 v10, 2, v9\nv_and_b32 v9, 3, v9")
                a("v_lshlrev_b32 v9, 7, v9\nv_lshl_add_u32 v9, v10, 10, v9")
                a(f"s_and_b32 s23, s21, 3\ns_mul_i32 s55, s23, {448*1024}\ns_and_b32 s23, s21, 4\ns_lshl_b32 s23, s23, 7\ns_add_u32 s55, s55, s23")
            else:
                a(f"s_lshl_b32 s55, s21, 7\ns_add_u32 s55, s55, s61\ns_mul_i32 s55, s55, {14*128}\nv_min_u32 v9, 13, v1\nv_lshlrev_b32 v9, 7, v9")
            a("buffer_load_dword v58, v9, s[32:35], s55 offen"); self.vm.issue("gt")
    def bias_load(self):
        for fi in range(4):
            self.a(f"global_load_dwordx2 v[{V_BRAW+2*fi}:{V_BRAW+2*fi+1}], v6, s[8:9] offset:{32*fi}"); self.vm.issue("b1")
    def bias_unpack(self):
        for i in range(8):
            self.a(f"v_lshlrev_b32 v{V_BIAS+2*i}, 16, v{V_BRAW+i}\nv_and_b32 v{V_BIAS+2*i+1}, 0xffff0000, v{V_BRAW+i}")
    def p1_addr_read(self):
        a = self.a
        a("v_and_b32 v2, 15, v1\nv_lshrrev_b32 v3, 4, v1\nv_bfe_u32 v4, v1, 1, 3")
        a("s_and_b32 s23, s20, 1\ns_lshl_b32 s23, s23, 13\nv_lshl_add_u32 v5, v2, 7, s23")
        for s in range(2):
            a(f"v_or_b32 v7, {4*s}, v3\nv_xor_b32 v7, v7, v4\nv_lshl_add_u32 v{V_XR+s}, v7, 4, v5")
        a("v_bfe_u32 v2, v1, 2, 2\nv_and_b32 v4, 3, v1\nv_bfe_u32 v5, v1, 4, 1")
        a("v_lshl_add_u32 v7, v3, 3, v2\nv_lshlrev_b32 v7, 8, v7\nv_lshl_add_u32 v7, v4, 3, v7")
        a("v_lshl_or_b32 v5, v5, 2, v2")
        a("s_and_b32 s23, s20, 2\ns_lshl_b32 s23, s23, 1")
        for f in range(4):
            a(f"s_or_b32 s53, s23, {f}\nv_xor_b32 v8, s53, v5\nv_lshl_add_u32 v{V_WR+f}, v8, 5, v7")
        for b in (1, 2):
            for s in range(2): a(f"v_add_u32 v{V_XR+2*b+s}, {b*65536}, v{V_XR+s}")
            for f in range(4): a(f"v_add_u32 v{V_WR+4*b+f}, {b*65536}, v{V_WR+f}")
    def w2_addr_dma(self):
        a = self.a
        a("v_lshrrev_b32 v2, 3, v1\nv_lshrrev_b32 v3, 4, v1\nv_and_b32 v4, 7, v1")
        a(f"v_lshlrev_b32 v5, 1, v3\nv_xor_b32 v4, v4, v5\nv_lshlrev_b32 v4, 4, v4\nv_lshl_add_u32 v{V_W2D}, v2, 10, v4")
        for j in range(1, 4): a(f"v_add_u32 v{V_W2D+j}, {j*7168}, v{V_W2D}")
        a(f"s_mul_i32 s56, s20, {448*1024}\ns_lshl_b32 s23, s47, 7\ns_add_u32 s56, s56, s23")
        a("s_lshl_b32 s57, s20, 13")
    def w2_addr_tr(self):
        a = self.a
        a("v_lshrrev_b32 v3, 4, v1\nv_bfe_u32 v2, v1, 2, 2\nv_and_b32 v4, 3, v1")
        a("v_lshl_add_u32 v7, v3, 2, v2\nv_bfe_u32 v5, v7, 1, 2\nv_lshlrev_b32 v7, 7, v7")
        a("v_lshl_add_u32 v7, v4, 3, v7\nv_add_u32 v7, s57, v7")
        a(f"v_lshl_add_u32 v{V_T2}, v5, 5, v7")
        for ni in range(1, 4): a(f"v_xor_b32 v{V_T2+ni}, {32*ni}, v{V_T2}")
        for b in (1, 2):
            for ni in range(4): a(f"v_add_u32 v{V_T2+4*b+ni}, {b*65536}, v{V_T2+ni}")
    def q_table(self, lo=0, hi=14, rq=None):
        a, o = self.a, self.o
        rq = rq or o.rq
        if rq:
            for q in range(lo, hi):
                if q == 0:
                    a(f"s_and_b32 s23, s63, {rq-1}\ns_mul_i32 s23, s23, {28//rq}\ns_add_u32 s23, s23, 1\ns_lshr_b32 s23, s23, 1\ns_lshl_b32 s{QT}, s23, 10")
                else: a(f"s_add_u32 s{QT+q}, s{QT+q-1}, 1024\ns_cmp_eq_u32 s{QT+q}, {14*1024}\ns_cselect_b32 s{QT+q}, 0, s{QT+q}")
            return
        if "/" in o.b2:
            base = 0
            for spec in o.b2.split(","):
                sz, n = map(int, spec.split("/"))
                for il in range(sz):
                    q = base + il
                    if not lo <= q < hi: continue
                    if il == 0:
                        a(f"s_and_b32 s61, s63, {n-1}\ns_mul_i32 s61, s61, {(sz//n)*1024}\ns_add_u32 s{QT+q}, s61, {base*1024}")
                    else:
                        a(f"s_add_u32 s{QT+q}, s{QT+q-1}, 1024\ns_cmp_eq_u32 s{QT+q}, {(base+sz)*1024}\ns_cselect_b32 s{QT+q}, {base*1024}, s{QT+q}")
                base += sz
            assert base == 14
            return
        if all(b == 1 for b in blocks(o.b2)):
            for q in range(lo, hi):
                if q == 0: a(f"s_lshl_b32 s{QT}, s62, 10")
                elif o.rqx == 0: a(f"s_movk_i32 s{QT+q}, {q*1024}")
                else: a(f"s_add_u32 s{QT+q}, s{QT+q-1}, 1024\ns_cmp_eq_u32 s{QT+q}, {14*1024}\ns_cselect_b32 s{QT+q}, 0, s{QT+q}")
            return
        base = 0
        for sz in blocks(o.b2):
            for il in range(sz):
                q = base + il
                if not lo <= q < hi: continue
                if sz in (1, 2, 4) and base % sz == 0 and o.rqx == 0:
                    if il == 0 or q == lo: a(f"s_and_b32 s61, s63, {sz-1}\ns_lshl_b32 s61, s61, 10")
                    a(f"s_xor_b32 s{QT+q}, s61, {q*1024}")
                    continue
                assert lo <= base and base + sz <= hi
                if il == 0:
                    self.mod_small(60, 63, sz); a(f"s_add_u32 s61, s60, {base}")
                else: a(f"s_add_u32 s61, s61, 1\ns_cmp_eq_u32 s61, {base+sz}\ns_cselect_b32 s61, {base}, s61")
                a(f"s_add_u32 s23, s61, s62\ns_cmp_ge_u32 s23, 14\ns_cselect_b32 s53, 14, 0\ns_sub_u32 s23, s23, s53\ns_lshl_b32 s{QT+q}, s23, 10")
            base += sz
        assert base == 14
    def poll_addr(self):
        self.a(f"s_lshl_b32 s49, s46, 2\ns_add_u32 s49, s49, s20\ns_lshl_b32 s49, s49, 7\ns_add_u32 s49, s49, {FLAG_OFF}")
    def common_addr(self):
        a = self.a
        a(f"v_mov_b32 v{V_ZERO}, 0")
        for mi in range(1, 4): a(f"v_add_u32 v{26+mi}, {mi*56*1024}, v11")
    def prod_addr(self):
        a = self.a
        a("s_and_b32 s60, s20, 1\ns_lshl_b32 s61, s44, 1\ns_add_u32 s60, s60, s61")
        a("s_lshr_b32 s23, s20, 1\ns_lshl_b32 s53, s45, 1\ns_add_u32 s23, s23, s53")
        a(f"s_mul_i32 s54, s60, {224*1024}\ns_lshl_b32 s53, s23, 11\ns_add_u32 s54, s54, s53")
        a("s_mul_i32 s53, s23, 37\ns_lshr_b32 s53, s53, 8\ns_mul_i32 s61, s53, 7\ns_sub_u32 s23, s23, s61")
        a("s_lshl_b32 s60, s60, 2\ns_add_u32 s60, s60, s53\ns_lshl_b32 s60, s60, 5\ns_add_u32 s60, s60, s23")
        a(f"s_lshl_b32 s60, s60, 2\ns_add_u32 s44, s60, {FLAG_OFF}")
    def hv(self, mi):
        return 11 if mi == 0 else 26 + mi

    def fr(self, n): return V_FR + 32 * (n % 2)
    def p1_reads(self, n):
        c, s = n // 2, n % 2
        slot = c % 5; b, so = slot // 2, (slot % 2) * SLOT
        f = self.fr(n)
        def B(mi): return (f"ds_read_b128 v[{f+16+4*mi}:{f+19+4*mi}], v{V_XR+2*b+s} offset:{so+mi*2048}", f"B{n}_{mi}")
        def A(fi): return [(f"ds_read_b64_tr_b16 v[{f+4*fi+2*h}:{f+4*fi+2*h+1}], v{V_WR+4*b+fi} offset:{so+16384+s*8192+h*1024}", f"A{n}_{fi}") for h in range(2)]
        return [B(0)] + A(0) + [B(1), B(2), B(3)] + A(1) + A(2) + A(3)
    def acc1(self, fi, mi): return V_ACC1 + 4 * (4 * fi + mi)
    def mfma1(self, n, fi, mi):
        f = self.fr(n); d = self.acc1(fi, mi)
        self.lg.wait([f"A{n}_{fi}", f"B{n}_{mi}"])
        cs = "0" if n == 0 else f"v[{d}:{d+3}]"
        self.a(f"{MF} v[{d}:{d+3}], v[{f+4*fi}:{f+4*fi+3}], v[{f+16+4*mi}:{f+19+4*mi}], {cs}")
    def epi_ops(self, u):
        L = []
        for mi in range(4):
            p = V_PK + 16 * u + 4 * mi
            for t in range(2):
                d = self.acc1(2 * u + t, mi)
                for i in range(4): L.append((f"v_max_f32 v{d+i}, 0, v{d+i}", None))
                for i in (0, 2): L.append((f"v_pk_mul_f32 v[{d+i}:{d+i+1}], v[{d+i}:{d+i+1}], v[{d+i}:{d+i+1}]", None))
                for i in (0, 2): L.append((f"v_cvt_pk_bf16_f32 v{p+2*t+i//2}, v{d+i}, v{d+i+1}", None))
            L.append((f"buffer_store_dwordx4 v[{p}:{p+3}], v{self.hv(mi)}, s[36:39], s54 offen offset:{u*1024} sc1", "hst"))
        return L
    def op(self, x):
        self.a(x[0])
        if x[1]: self.vm.issue(x[1])
    def all_pieces(self):
        P = []
        for i in range(8): P += self.p1_pieces(i)
        for q in range(self.o.w2early): P += self.w2_pieces(q)
        return P
    def p1_main(self):
        a, vm, lg, o = self.a, self.vm, self.lg, self.o
        P = self.P
        def due(slot, force=None, cap=10**6):
            while cap > 0 and self.pi < len(P) and (4 * self.pi - o.L <= slot or (force is not None and self.pi < force)):
                cap -= 1
                p = self.pi
                free_at = 32 * (p // 8 - 5 + 1) + 16 if p >= 40 else -10**9
                if slot < free_at: assert force is None or p >= force; break
                self.emit(P[p]); self.pi += 1
        due(-1, cap=o.upb - self.pi)
        vm.wait("c0")
        self.stamp()
        a("s_barrier")
        for r in self.p1_reads(0): a(r[0]); lg.issue(r[1])
        slot = 0
        badd = []
        last = 14 if o.stag else 16
        for n in range(last):
            c, s = n // 2, n % 2
            if s == 1 and c < 7:
                due(slot - 1, force=8 * (c + 2))
                vm.wait(f"c{c+1}")
                a("s_barrier")
                if o.cst: self.stamp()
            if n == o.biasn - 1:
                vm.wait("b1")
                n0 = len(a.lines); self.bias_unpack(); self.fill = a.lines[n0:] + self.fill; a.lines = a.lines[:n0]
            R = self.p1_reads(n + 1) if n + 1 < 16 else []
            order = [(fi, mi if fi % 2 == 0 else 3 - mi) for fi in range(4) for mi in range(4)]
            for k, (fi, mi) in enumerate(order):
                self.mfma1(n, fi, mi)
                if n == 15 and k == 12: a("s_barrier")
                if k < 12 and R:
                    r = R.pop(0); a(r[0]); lg.issue(r[1])
                if slot % o.cad == o.cad - 1: due(slot, cap=1)
                if o.biasn <= n < o.biasn + 4: badd.append((slot + 9, fi, mi, n - o.biasn))
                while badd and badd[0][0] <= slot:
                    _, f2, m2, h = badd.pop(0); d = self.acc1(f2, m2)
                    a(f"v_add_f32 v{d+h}, v{d+h}, v{V_BIAS+4*f2+h}")
                if n >= o.defer or n == o.biasn - 1: self.filler(1)
                slot += 1
            if n == 9: self.filler(10000)
        if not o.stag:
            self.stamp()
            due(10**6)
            a("s_nop 4")
            return self.epi_ops(0) + self.epi_ops(1)
        R = self.p1_reads(15)
        seq0 = [(n, fi, mi if fi % 2 == 0 else 3 - mi) for n in (14, 15) for fi in (0, 1) for mi in range(4)]
        seq1 = [(n, fi, mi if fi % 2 == 0 else 3 - mi) for n in (14, 15) for fi in (2, 3) for mi in range(4)]
        for k, (n, fi, mi) in enumerate(seq0):
            self.mfma1(n, fi, mi)
            for _ in range(2 if k < 4 else 1):
                if R:
                    r = R.pop(0); a(r[0]); lg.issue(r[1])
            if k >= 8: due(slot)
            slot += 1
        due(10**6)
        if o.wtpos == 0: self.w2t()
        E = self.epi_ops(0)
        for k, (n, fi, mi) in enumerate(seq1):
            self.mfma1(n, fi, mi)
            if k == 12: a("s_barrier")
            if k == 0: a("s_nop 2")
            if k >= 1:
                for _ in range(o.epr):
                    if o.stg:
                        ix = [i for i, x in enumerate(E) if not x[1]]
                        if ix: self.op(E.pop(ix[0]))
                    elif E: self.op(E.pop(0))
        self.stamp()
        if len(E) < 8: a("s_nop 7")
        return E + self.epi_ops(1)
    def w2_tr_list(self, q):
        slot = W2SLOT[q]; b, so = slot // 2, (slot % 2) * SLOT + (q & 1) * 4096
        return [f"ds_read_b64_tr_b16 a[{16*q+4*ni+2*h}:{16*q+4*ni+2*h+1}], v{V_T2+4*b+ni} offset:{so+h*2048}" for ni in range(4) for h in range(2)]
    def w2_tr(self, q):
        self.vm.wait(f"w{q}")
        for l in self.w2_tr_list(q): self.a(l)
    def tag_issue(self):
        self.a(f"global_load_dword v{V_TAG}, v{V_ZERO}, s[16:17] sc1"); self.vm.issue("tag")
    def tag_check(self, lbl):
        a = self.a
        self.vm.wait("tag")
        a(f"s_mov_b32 s23, {SPIN}")
        a(f"{lbl}_chk:\nv_readfirstlane_b32 s48, v{V_TAG}\ns_nop 0\ns_cmp_lg_u32 s48, 0\ns_cbranch_scc1 {lbl}_ok")
        a(f"s_sub_u32 s23, s23, 1\ns_cmp_eq_u32 s23, 0\ns_cbranch_scc1 {lbl}_ok")
        a(f"s_sleep 2\nglobal_load_dword v{V_TAG}, v{V_ZERO}, s[16:17] sc1\ns_waitcnt vmcnt(0)\ns_branch {lbl}_chk")
        a(f"{lbl}_ok:")
    def poll_issue(self):
        self.a("s_load_dwordx8 s[4:11], s[18:19], s49 glc")
    def poll_check(self):
        a, o = self.a, self.o
        a(f"s_mov_b32 s23, {SPIN}")
        a("L_poll_chk:\ns_waitcnt lgkmcnt(0)")
        for i in range(7): a(f"s_xor_b32 s{4+i}, s{4+i}, s48")
        for i in range(1, 7): a(f"s_or_b32 s4, s4, s{4+i}")
        a("s_cbranch_scc0 L_poll_ok\ns_sub_u32 s23, s23, 1\ns_cmp_eq_u32 s23, 0\ns_cbranch_scc1 L_poll_ok")
        if o.psleep: a(f"s_sleep {o.psleep}")
        a("s_load_dwordx8 s[4:11], s[18:19], s49 glc\ns_branch L_poll_chk")
        a("L_poll_ok:")

    def p2_setup(self):
        a = self.a
        a("v_and_b32 v8, 15, v1\nv_lshrrev_b32 v9, 4, v1\nv_and_b32 v10, 7, v1")
        a("v_xor_b32 v9, v9, v10\nv_lshlrev_b32 v9, 4, v9\nv_lshl_add_u32 v9, v8, 8, v9\nv_add_u32 v2, s57, v9\nv_xor_b32 v3, 64, v2")
        a("v_lshrrev_b32 v8, 4, v0\nv_and_b32 v9, 15, v0\nv_and_b32 v10, 7, v8")
        a("v_xor_b32 v10, v10, v9\nv_lshlrev_b32 v10, 4, v10\nv_lshl_add_u32 v6, v8, 8, v10")
        a("s_lshl_b32 s23, s46, 16\ns_lshl_b32 s53, s47, 7\ns_add_u32 s58, s23, s53")
        a("v_lshlrev_b32 v7, 10, v8\nv_lshl_add_u32 v7, v9, 3, v7")
        a("v_lshlrev_b32 v12, 16, v60\nv_and_b32 v13, 0xffff0000, v60\nv_lshlrev_b32 v14, 16, v61\nv_and_b32 v15, 0xffff0000, v61")
        a(f"s_mul_i32 s59, s46, {224*1024}\ns_mul_i32 s23, s20, {14*1024}\ns_add_u32 s59, s59, s23")
    def hreg(self, s, mi):
        q = (4 * s + mi) % 44
        return f"v[{96+4*q}:{99+4*q}]" if q < 36 else f"a[{224+4*(q-36)}:{227+4*(q-36)}]"
    def acc2(self, ni, mi): return 32 + 4 * (4 * ni + mi)
    def p2_load_ops(self, s):
        L = []
        for mi in range(4):
            pre = f"s_add_u32 s60, s59, s{QT+s}\n" if mi == 0 else ""
            L.append((pre + f"buffer_load_dwordx4 {self.hreg(s, mi)}, v{self.hv(mi)}, s[36:39], s60 offen sc1", f"h{s}_{mi}"))
        return L
    def mfma2(self, s, ni, mi):
        d = self.acc2(ni, mi)
        self.vm.wait(f"h{s}_{mi}")
        cs = "0" if s == 0 else f"v[{d}:{d+3}]"
        self.a(f"{MF} v[{d}:{d+3}], a[{16*s+4*ni}:{16*s+4*ni+3}], {self.hreg(s, mi)}, {cs}")
    def red_write(self, ni, mi):
        d = self.acc2(ni, mi)
        return f"ds_write_b128 v{2+(ni&1)}, v[{d}:{d+3}] offset:{(ni>>1)*128+(mi&1)*4096+(mi>>1)*32768}"
    def p2_main(self):
        a, vm, o = self.a, self.vm, self.o
        late = list(range(14 - o.late, 14))
        stream = []
        for s in range(14):
            stream.append(self.p2_load_ops(s))
            if late and s >= o.lat0: stream.append(self.w2_pieces(late.pop(0)))
        assert not late
        flat = []
        for u, ops in enumerate(stream): flat += [(u, p) for p in ops]
        def upto(step):
            idx = [i for i, (_, p) in enumerate(flat) if p[1].startswith(f"h{min(step, 13)}_")]
            return idx[-1] + 1 if idx else 0
        for _ in range(upto(o.hup - 1)): self.emit(flat.pop(0)[1])
        trq = [(q, l) for q in range(14 - o.late - o.trlate, 14) for l in self.w2_tr_list(q)]
        first_late = 14 - o.late - o.trlate
        tail = o.tail
        for s in range(14 - tail):
            order = [(ni if mi % 2 == 0 else 3 - ni, mi) for mi in range(4) for ni in range(4)]
            if s >= first_late:
                while trq and trq[0][0] <= s:
                    q, l = trq.pop(0); vm.wait(f"w{q}"); a(l)
                a("s_waitcnt lgkmcnt(0)")
            quota = upto(s + o.hup) if s < 13 - tail else len(flat)
            for k, (ni, mi) in enumerate(order):
                self.mfma2(s, ni, mi)
                if s == 0 and k == 0: self.stamp()
                kq = (quota * (k + 1)) // 16 - (quota * k) // 16
                for _ in range(kq): self.emit(flat.pop(0)[1])
                if not kq and trq and f"w{trq[0][0]}" not in vm.q and not any(p[1] == f"w{trq[0][0]}" for _, p in flat):
                    a(trq.pop(0)[1])
        while flat: self.emit(flat.pop(0)[1])
        while trq:
            q, l = trq.pop(0); vm.wait(f"w{q}"); a(l)
        tiles = [(ni if mi % 2 == 0 else 3 - ni, mi) for mi in range(4) for ni in range(4)]
        assert not trq
        a("s_waitcnt lgkmcnt(0)")
        if tail:
            lag = -(-8 // tail) + 1
            for t, (ni, mi) in enumerate(tiles):
                for s in range(14 - tail, 14): self.mfma2(s, ni, mi)
                if t >= lag: a(self.red_write(*tiles[t - lag]))
            self.stamp()
            a("s_nop 7")
            for t in range(16 - lag, 16): a(self.red_write(*tiles[t]))
        else:
            self.stamp()
            a("s_nop 7")
            for t in tiles: a(self.red_write(*t))
    def p2_final(self):
        a = self.a
        a("s_waitcnt lgkmcnt(0)\ns_barrier")
        for i in range(4):
            for src in range(4):
                r = 96 + 16 * i + 4 * src
                a(f"ds_read_b128 v[{r}:{r+3}], v6 offset:{src*8192+(i>>1)*32768+(i&1)*4096}")
        for i in range(4):
            r = 96 + 16 * i
            a(f"s_waitcnt lgkmcnt({12-4*i})")
            for h in (0, 2):
                a(f"v_pk_add_f32 v[{r+h}:{r+h+1}], v[{r+h}:{r+h+1}], v[{r+4+h}:{r+5+h}]")
                a(f"v_pk_add_f32 v[{r+8+h}:{r+9+h}], v[{r+8+h}:{r+9+h}], v[{r+12+h}:{r+13+h}]")
            for h in (0, 2):
                a(f"v_pk_add_f32 v[{r+h}:{r+h+1}], v[{r+h}:{r+h+1}], v[{12+h}:{13+h}]")
            for h in (0, 2):
                a(f"v_pk_add_f32 v[{r+h}:{r+h+1}], v[{r+h}:{r+h+1}], v[{r+8+h}:{r+9+h}]")
            a(f"v_cvt_pk_bf16_f32 v{r+4}, v{r}, v{r+1}\nv_cvt_pk_bf16_f32 v{r+5}, v{r+2}, v{r+3}")
            a(f"s_add_u32 s53, s58, {i*16*1024}")
            a(f"buffer_store_dwordx2 v[{r+4}:{r+5}], v7, s[40:43], s53 offen {self.o.outsc}")
    def q_hreg(self, idx):
        q = idx % 40
        return f"v[{112+4*q}:{115+4*q}]" if q < 32 else f"a[{224+4*(q-32)}:{227+4*(q-32)}]"
    def p2q(self):
        a, vm, o = self.a, self.vm, self.o
        RB = 96
        flat = []
        for mi in range(4):
            for s in range(14):
                flat.append((f"s_add_u32 s60, s59, s{QT+s}\nbuffer_load_dwordx4 {self.q_hreg(14*mi+s)}, v{self.hv(mi)}, s[36:39], s60 offen sc1", f"h{mi}_{s}"))
        nis = 0
        for _ in range(o.qup): self.emit(flat.pop(0)); nis += 1
        trq = [(q, l) for q in range(14 - o.trlate, 14) for l in self.w2_tr_list(q)]
        def reduce_ops(mi):
            L = []
            for src in range(4):
                L.append(f"ds_read_b128 v[{RB+4*src}:{RB+4*src+3}], v6 offset:{src*8192+(mi>>1)*32768+(mi&1)*4096}")
            L.append("s_waitcnt lgkmcnt(2)")
            for i in range(4): L.append(f"v_add_f32 v{RB+i}, v{RB+i}, v{RB+4+i}")
            L.append("s_waitcnt lgkmcnt(0)")
            for i in range(4): L.append(f"v_add_f32 v{RB+8+i}, v{RB+8+i}, v{RB+12+i}")
            for i in range(4): L.append(f"v_add_f32 v{RB+i}, v{RB+i}, v{12+i}")
            for i in range(4): L.append(f"v_add_f32 v{RB+i}, v{RB+i}, v{RB+8+i}")
            L.append(f"v_cvt_pk_bf16_f32 v{16+2*mi}, v{RB}, v{RB+1}")
            L.append(f"v_cvt_pk_bf16_f32 v{17+2*mi}, v{RB+2}, v{RB+3}")
            return L
        def store(mi):
            return f"s_add_u32 s53, s58, {mi*16*1024}\nbuffer_store_dwordx2 v[{16+2*mi}:{17+2*mi}], v7, s[40:43], s53 offen {o.outsc}"
        side = []
        slot = 0; stored = 0; packed = 0
        for mi in range(4):
            for s in range(14):
                if mi == 0 and s >= 14 - o.trlate:
                    while trq and trq[0][0] <= s:
                        q, l = trq.pop(0); vm.wait(f"w{q}"); a(l)
                    a("s_waitcnt lgkmcnt(0)")
                for k in range(4):
                    ni = k if s % 2 == 0 else 3 - k
                    d = self.acc2(ni, mi)
                    vm.wait(f"h{mi}_{s}")
                    cs = "0" if s == 0 else f"v[{d}:{d+3}]"
                    a(f"{MF} v[{d}:{d+3}], a[{16*s+4*ni}:{16*s+4*ni+3}], {self.q_hreg(14*mi+s)}, {cs}")
                    if slot == 0: self.stamp()
                    if k == 3 and flat:
                        assert nis - 40 <= 14 * mi + s
                        self.emit(flat.pop(0)); nis += 1
                    elif trq and f"w{trq[0][0]}" not in vm.q: a(trq.pop(0)[1])
                    elif side and side[0][0] <= slot:
                        t = side.pop(0)[1]; a(t)
                        if t.startswith("v_add") and side and side[0][1].startswith("v_add"): a(side.pop(0)[1])
                        if "v_cvt_pk" in t: packed += 1
                        if t.startswith("s_waitcnt lgkmcnt") and side and "s_barrier" in side[0][1]: a(side.pop(0)[1])
                    elif not flat and stored < packed // 2 and k == 1:
                        a(store(stored)); stored += 1
                    slot += 1
            assert not side and not trq
            if mi < 3:
                for ni in range(4): side.append((slot + 8, self.red_write(ni, mi)))
                side.append((slot + o.qbar, "s_waitcnt lgkmcnt(0)")); side.append((0, "s_barrier"))
                side += [(0, t) for t in reduce_ops(mi)]
        self.stamp()
        while stored < 3: a(store(stored)); stored += 1
        a("s_nop 4")
        for ni in (3, 2, 1, 0): a(self.red_write(ni, 3))
        a("s_waitcnt lgkmcnt(0)\ns_barrier")
        for t in reduce_ops(3): a(t)
        a(store(3))
    def idle_early(self):
        a, o, vm = self.a, self.o, self.vm
        if o.ct:
            a("s_getpc_b64 s[60:61]\nL_pc:\ns_sub_u32 s60, s60, L_pc-" + NAME + "_kernel\ns_subb_u32 s61, s61, 0")
            a("s_sub_u32 s23, s22, 28\ns_lshl_b32 s23, s23, 12\nv_lshl_add_u32 v2, v0, 4, s23\nv_and_b32 v2, 0xffffffc0, v2")
            a("v_min_u32 v2, L_end-" + NAME + "_kernel, v2\nglobal_load_dword v59, v2, s[60:61]")
        a("s_cmp_lg_u32 s2, 224\ns_cbranch_scc1 L_nopub\ns_cmp_lg_u32 s20, 0\ns_cbranch_scc1 L_fl")
        a(f"v_mov_b32 v32, {EPOCH_OFF}\nglobal_load_dword v33, v32, s[18:19]\nv_mov_b32 v{V_ZERO}, 0\ns_waitcnt vmcnt(0)")
        a("v_add_u32 v33, 0x2468ace, v33\nv_or_b32 v33, 1, v33\ns_mov_b64 exec, 1")
        a(f"global_store_dword v{V_ZERO}, v33, s[16:17] sc1\nglobal_store_dword v32, v33, s[18:19] sc1\ns_mov_b64 exec, -1\ns_branch L_nopub")
        a("L_fl:\ns_cmp_lt_u32 s20, 2\ns_cbranch_scc1 L_nopub")
        a(f"v_lshlrev_b32 v32, 7, v0\nv_add_u32 v32, {FLAG_OFF - 128*128}, v32\nglobal_load_dword v33, v32, s[18:19]")
        a("L_nopub:")
        a("s_sub_u32 s60, s22, 28\ns_lshl_b32 s60, s60, 2\ns_add_u32 s60, s60, s20")
        if o.ip:
            a("s_and_b32 s23, s21, 3\ns_lshl_b32 s61, s23, 19\ns_lshr_b32 s55, s21, 2\ns_lshl_b32 s53, s55, 18\ns_add_u32 s61, s61, s53")
            a("s_lshl_b32 s53, s60, 14\ns_add_u32 s61, s61, s53\nv_and_b32 v35, 15, v1\nv_lshlrev_b32 v35, 10, v35")
            a("s_lshl_b32 s53, s60, 2\ns_add_u32 s53, s53, s23\ns_mul_i32 s53, s53, 3584\ns_mul_i32 s55, s55, 1792\ns_add_u32 s55, s55, s53")
            a("v_min_u32 v36, 13, v1\nv_lshlrev_b32 v36, 7, v36")
            def w2touch():
                if o.t2 == 2:
                    a("v_lshrrev_b32 v37, 3, v1\nv_lshlrev_b32 v37, 15, v37\nv_bfe_u32 v38, v1, 2, 1\nv_lshl_add_u32 v37, v38, 10, v37")
                    a("v_and_b32 v38, 3, v1\nv_lshl_add_u32 v37, v38, 7, v37")
                    a(f"s_mul_i32 s53, s23, {448*1024}\ns_lshl_b32 s58, s60, 11\ns_add_u32 s53, s53, s58\ns_and_b32 s58, s21, 4\ns_lshl_b32 s58, s58, 7\ns_add_u32 s53, s53, s58")
                else:
                    a("v_lshrrev_b32 v37, 3, v1\nv_lshlrev_b32 v37, 15, v37\nv_and_b32 v38, 7, v1\nv_lshl_add_u32 v37, v38, 7, v37")
                    a(f"s_mul_i32 s53, s23, {448*1024}\ns_lshl_b32 s58, s60, 10\ns_add_u32 s53, s53, s58\ns_and_b32 s58, s21, 4\ns_lshl_b32 s58, s58, 12\ns_add_u32 s53, s53, s58")
                a("buffer_load_dword v42, v37, s[32:35], s53 offen")
                a(f"v_cmp_gt_u32 vcc, {6*32768}, v37\ns_add_u32 s53, s53, {8*32768}\ns_nop 1\nv_cndmask_b32 v37, 0, v37, vcc")
                a("buffer_load_dword v43, v37, s[32:35], s53 offen")
            for c in range(o.ip0, 9):
                if c == o.ip2 and "2" in o.ip: w2touch()
                if c == 8 or "x" not in o.ip: continue
                a(f"s_add_u32 s53, s55, {c*64*3584}")
                a(f"buffer_load_dword v40, v35, s[24:27], s61 offen offset:{c*128}")
                a(f"buffer_load_dword v41, v36, s[28:31], s53 offen")
    def idle_path(self):
        a, o, vm = self.a, self.o, self.vm
        if o.pf2:
            a("s_sub_u32 s60, s22, 28\ns_lshl_b32 s60, s60, 2\ns_add_u32 s60, s60, s20\nv_lshlrev_b32 v34, 7, v1")
            a(f"s_lshr_b32 s61, s60, 2\ns_mul_i32 s61, s61, {448*1024}\ns_and_b32 s23, s60, 3\ns_lshl_b32 s23, s23, 13\ns_add_u32 s61, s61, s23")
            for t in range(o.pf2):
                a(f"s_add_u32 s53, s61, {t*32768}\nbuffer_load_dword v44, v34, s[32:35], s53 offen")
        vm.q = []
        nl = 14 - o.late
        for q in range(min(10, nl)): self.w2_dma(q)
        for q in range(nl - o.trlate):
            self.w2_tr(q)
            if q == 0: self.p2_setup()
            if q in (1, 3):
                a("s_waitcnt lgkmcnt(0)")
                for qq in (9 + q, 10 + q):
                    if qq < nl: self.w2_dma(qq)
        self.tag_issue(); self.tag_check("L_tagi")
        a("s_waitcnt vmcnt(0)")
        self.poll_issue()
        vm.q = []

def gen(o):
    k = G(o); a = k.a; vm = k.vm
    k.prologue()
    a("s_cmp_ge_u32 s22, 28\ns_cbranch_scc1 L_idle")
    k.chunk_entry(0); k.chunk_entry(1)
    k.P = k.all_pieces(); k.pi = 0
    for p in k.P[:8]: k.emit(p)
    k.bias_load()
    for p in k.P[8:o.upa]: k.emit(p)
    k.pi = o.upa
    a("s_branch L_act")
    a("L_idle:")
    k.idle_early()
    a("s_branch L_idle2")
    a("L_act:")
    n1 = len(a.lines)
    k.chunk_entry(2)
    k.p1_addr_read()
    k.p2_tile(); k.b2_load()
    n0 = len(a.lines)
    for i in range(3, 8): k.chunk_entry(i)
    NQ0 = 10 if o.stg else 6
    k.w2_addr_dma(); k.q_table(0, NQ0); k.common_addr(); k.prod_addr(); k.w2t_addr()
    a.lines[n1:] = [l.replace("s53", "s55") for l in a.lines[n1:]]
    if o.defer < 16:
        k.fill = a.lines[n0:]
        a.lines = a.lines[:n0]
    E = k.p1_main()
    def mid(tagp, nb):
        nq = o.w2early
        for _ in range(nb): k.w2_dma(nq); nq += 1
        if nb:
            for x in E:
                if not x[1]: k.op(x)
            for x in E:
                if x[1]: k.op(x)
        else:
            for x in E: k.op(x)
        k.tag_issue()
        k.stamp()
        k.q_table(NQ0, 14)
        k.w2_addr_tr(); k.poll_addr()
        k.p2_setup()
        done = 0
        while done < nq: k.w2_tr(done); done += 1
        k.tag_check(tagp)
        a("s_atomic_swap s48, s[18:19], s44\ns_nop 0")
        k.stamp()
        nl = 14 - o.late
        assert done >= 4
        while nq < nl:
            if nq == 10: a("s_waitcnt lgkmcnt(0)")
            if nq == nl - o.pollat: k.poll_issue()
            k.w2_dma(nq); nq += 1
        if o.pollat == 0: k.poll_issue()
        while done < nl - o.trlate: k.w2_tr(done); done += 1
        assert done == nl - o.trlate
        a("s_branch L_join")
        return list(vm.q)
    if o.stg:
        a(f"s_bitcmp1_b32 s22, {o.stgbit}\ns_cbranch_scc1 L_midb")
        q0 = list(vm.q); n_ = k.nst
        qa = mid("L_taga", 0)
        a("L_midb:")
        vm.q = q0; k.nst = n_
        qb = mid("L_tagb", o.stg)
        assert qa == qb, (qa, qb)
    else:
        qa = mid("L_taga", 0)
    nst = k.nst
    a("L_idle2:")
    k.p2_tile(True); k.b2_load(); k.w2_addr_dma(); k.common_addr(); k.q_table(rq=o.irq); k.w2_addr_tr(); k.poll_addr()
    k.nst = 1 if o.stamps else 0
    k.idle_path()
    while k.nst < nst: k.stamp()
    a("L_join:")
    vm.q = qa
    k.stamp()
    k.poll_check()
    if o.prewarm:
        for st in range(14):
            for p in k.p2_load_ops(st): a(p[0])
        a("s_waitcnt vmcnt(0)\ns_sleep 40")
    k.stamp()
    n0 = len(a.lines)
    if o.quart: k.p2q()
    else: k.p2_main()
    if o.nomfma2: a.lines[n0:] = [l for l in a.lines[n0:] if "v_mfma" not in l]
    if o.noload2: a.lines[n0:] = [l for l in a.lines[n0:] if "buffer_load" not in l]
    if not o.quart: k.p2_final()
    if o.stamps:
        a("s_waitcnt vmcnt(0)")
        k.stamp()
        a("s_lshl_b32 s23, s2, 2\ns_add_u32 s23, s23, s20")
        stamp_flush(a, k.nst, 18, 23, base=STB)
    a("L_end:\ns_endpgm")
    return kernel_file([dict(name=NAME + "_kernel", grid=256, block=256, lds=160*1024, body=a.text(), vgpr=512, accum=256, sgpr=102)], single=True)

def parser():
    ap = argparse.ArgumentParser()
    ap.add_argument("out")
    ap.add_argument("--stamps", action="store_true")
    ap.add_argument("--b1", default="2,2,2,2")
    ap.add_argument("--b2", default="6/2,6/2,2/2")
    ap.add_argument("--up", type=int, default=2)
    ap.add_argument("--dist", type=int, default=3)
    ap.add_argument("--stag", type=int, default=1)
    ap.add_argument("--epr", type=int, default=2)
    ap.add_argument("--w2early", type=int, default=5)
    ap.add_argument("--trearly", type=int, default=0)
    ap.add_argument("--w2mid", type=int, default=0)
    ap.add_argument("--rqx", type=int, default=0)
    ap.add_argument("--help1", default="")
    ap.add_argument("--pf2", type=int, default=0)
    ap.add_argument("--hup", type=int, default=3)
    ap.add_argument("--tail", type=int, default=1)
    ap.add_argument("--outsc", default="sc1")
    ap.add_argument("--t2", type=int, default=3)
    ap.add_argument("--gt", default="")
    ap.add_argument("--cst", type=int, default=0)
    ap.add_argument("--fl", type=int, default=1)
    ap.add_argument("--late", type=int, default=0)
    ap.add_argument("--trlate", type=int, default=3)
    ap.add_argument("--psleep", type=int, default=0)
    ap.add_argument("--ct", type=int, default=1)
    ap.add_argument("--ip2", type=int, default=8)
    ap.add_argument("--biaspos", type=int, default=1)
    ap.add_argument("--ip", default="x2")
    ap.add_argument("--ip0", type=int, default=3)
    ap.add_argument("--gtpos", type=int, default=1)
    ap.add_argument("--defer", type=int, default=16)
    ap.add_argument("--L", type=int, default=80)
    ap.add_argument("--upa", type=int, default=10)
    ap.add_argument("--stg", type=int, default=0)
    ap.add_argument("--stgbit", type=int, default=0)
    ap.add_argument("--wtn", type=int, default=0)
    ap.add_argument("--wt0", type=int, default=6)
    ap.add_argument("--wtpos", type=int, default=0)
    ap.add_argument("--irq", type=int, default=4)
    ap.add_argument("--quart", type=int, default=0)
    ap.add_argument("--qup", type=int, default=12)
    ap.add_argument("--qbar", type=int, default=20)
    ap.add_argument("--prewarm", type=int, default=0)
    ap.add_argument("--nomfma2", type=int, default=0)
    ap.add_argument("--noload2", type=int, default=0)
    ap.add_argument("--rq", type=int, default=0)
    ap.add_argument("--pollat", type=int, default=1)
    ap.add_argument("--lat0", type=int, default=0)
    ap.add_argument("--pcad", type=int, default=4)
    ap.add_argument("--nt", default="")
    ap.add_argument("--ntn", type=int, default=8)
    ap.add_argument("--upb", type=int, default=20)
    ap.add_argument("--cad", type=int, default=1)
    ap.add_argument("--biasn", type=int, default=3)
    return ap
if __name__ == "__main__":
    o = parser().parse_args()
    open(o.out, "w").write(gen(o))
```
